```python
import torch

def _softmax(x, axis=-1):
    return torch.softmax(x, dim=axis)

def _gelu(x):
    return torch.nn.functional.gelu(x, approximate='tanh')

def _silu(x):
    return torch.nn.functional.silu(x)

def _sigmoid(x):
    return torch.sigmoid(x)

def _layernorm(x, axis=-1, eps=1e-05):
    m = x.mean(dim=axis, keepdim=True)
    v = x.var(dim=axis, keepdim=True, unbiased=False)
    return (x - m) / torch.sqrt(v + eps)

def _scatter_add(tgt, idx, src, axis=0):
    return tgt.clone().index_add_(axis, idx, src)

def _segment_sum(src, seg, n):
    out = torch.zeros((n,) + src.shape[1:], dtype=src.dtype)
    return out.index_add_(0, seg, src)

def _pad(x, pw):
    flat = tuple((v for pair in reversed(pw) for v in pair))
    return torch.nn.functional.pad(x, flat)
kernel_name = 'concat_heads__softmax_full_mha__memory_aug_recurrent_mem_tr__prompt'

def setup_inputs():

    _w = lambda a: (lambda t: t.to(torch.bfloat16) if t.is_floating_point() else t)(torch.as_tensor(a))

    def _A_setup():
        B, S, D = (1, 2048, 576)
        return {'x': _w((lambda *s: torch.randn(*s, dtype=torch.bfloat16) * 0.2)(B, S, D)), 'wqkv': _w((lambda *s: torch.randn(*s, dtype=torch.bfloat16) * 0.2)(D, 3 * D)), 'wo': _w((lambda *s: torch.randn(*s, dtype=torch.bfloat16) * 0.05)(D, D))}
    _A_in = _A_setup()

    def _B_setup():
        B, S, Dm = (1, 2048, 576)
        H, Dh = (32, 128)
        M, seg = (8, 32)
        seg = min(seg, S)
        S = S // seg * seg
        return {'x': _w((lambda *s: torch.randn(*s, dtype=torch.bfloat16) * 0.05)(B, S, Dm)), 'mem0': _w((lambda *s: torch.randn(*s, dtype=torch.bfloat16) * 0.8)(B, M, Dm)), 'Wq': _w((lambda *s: torch.randn(*s, dtype=torch.bfloat16) * 1.6)(Dm, H, Dh) * Dm ** (-0.5)), 'Wk': _w((lambda *s: torch.randn(*s, dtype=torch.bfloat16) * 1.6)(Dm, H, Dh) * Dm ** (-0.5)), 'Wv': _w((lambda *s: torch.randn(*s, dtype=torch.bfloat16) * 0.8)(Dm, H, Dh) * Dm ** (-0.5)), 'Wo': _w((lambda *s: torch.randn(*s, dtype=torch.bfloat16) * 0.8)(H, Dh, Dm) * (H * Dh) ** (-0.5)), 'seg_len': seg}
    _B_in = _B_setup()
    return {'A_x': _A_in['x'], 'A_wqkv': _A_in['wqkv'], 'A_wo': _A_in['wo'], 'B_x': _B_in['x'], 'B_mem0': _B_in['mem0'], 'B_Wq': _B_in['Wq'], 'B_Wk': _B_in['Wk'], 'B_Wv': _B_in['Wv'], 'B_Wo': _B_in['Wo'], 'B_seg_len': _B_in['seg_len']}

def reference(A_x, A_wqkv, A_wo, B_x, B_mem0, B_Wq, B_Wk, B_Wv, B_Wo, B_seg_len):

    def _A_ref(x, wqkv, wo):
        B, S, D = x.shape
        H = 32
        Dh = D // H
        qkv = (lambda x, *d: x.permute(*d))((x @ wqkv).reshape(B, S, 3, H, Dh), 2, 0, 3, 1, 4)
        q, k, v = (qkv[0], qkv[1], qkv[2])
        scale = Dh ** (-0.5)
        scores = torch.einsum('bhqd,bhkd->bhqk', q, k) * scale
        p = _softmax(scores, axis=-1)
        o = torch.einsum('bhqk,bhkd->bhqd', p, v)
        return (lambda x, *d: x.permute(*d))(o, 0, 2, 1, 3).reshape(B, S, D) @ wo

    def _B_ref(x, mem0, Wq, Wk, Wv, Wo, seg_len):
        B, S, Dm = x.shape
        H, Dh = (Wq.shape[1], Wq.shape[2])
        M = mem0.shape[1]
        scale = Dh ** (-0.5)
        n_seg = S // seg_len
        L = M + seg_len
        idx = torch.arange(L)
        mask = (idx[:, None] < M) | (idx[:, None] >= idx[None, :])
        mem = mem0
        outs = []
        for s in range(n_seg):
            xs = x[:, s * seg_len:(s + 1) * seg_len, :].clone()
            h = torch.concatenate([mem, xs], axis=1)
            q = torch.einsum('btd,dhe->bhte', h, Wq)
            k = torch.einsum('btd,dhe->bhte', h, Wk)
            v = torch.einsum('btd,dhe->bhte', h, Wv)
            scores = torch.einsum('bhqe,bhke->bhqk', q, k) * scale
            scores = torch.where(mask[None, None], scores, -1000000000.0)
            p = _softmax(scores, axis=-1)
            o = torch.einsum('bhqk,bhke->bhqe', p, v)
            o = torch.einsum('bhte,hed->btd', o, Wo)
            mem = o[:, :M, :].clone()
            outs.append(o[:, M:, :])
        return torch.concatenate(outs, axis=1)
    a = _A_ref(A_x, A_wqkv, A_wo)
    b = _B_ref(B_x, B_mem0, B_Wq, B_Wk, B_Wv, B_Wo, B_seg_len)
    return torch.concatenate([a, b], axis=-1)
```

```python
import re

TRANS = ("v_exp_f32", "v_log_f32", "v_rcp_f32", "v_rsq_f32", "v_sqrt_f32", "v_sin_f32", "v_cos_f32", "v_rcp_iflag_f32")
_REG = re.compile(r"^(-|\|)?(?:abs\()?([vas])(?:(\d+)|\[(\d+):(\d+)\])\)?\|?$")

def parse_reg(tok):
    tok = tok.strip()
    if tok in ("vcc",): return [("s", 106), ("s", 107)]
    if tok == "vcc_lo": return [("s", 106)]
    if tok == "vcc_hi": return [("s", 107)]
    if tok == "exec": return [("s", 126), ("s", 127)]
    if tok == "exec_lo": return [("s", 126)]
    if tok == "exec_hi": return [("s", 127)]
    if tok == "m0": return [("s", 124)]
    t = tok
    if t.startswith("-"): t = t[1:]
    if t.startswith("|") and t.endswith("|"): t = t[1:-1]
    if t.startswith("abs(") and t.endswith(")"): t = t[4:-1]
    m = re.match(r"^([vas])(?:(\d+)|\[(\d+):(\d+)\])$", t)
    if not m: return []
    f = m.group(1)
    if m.group(2) is not None:
        lo = hi = int(m.group(2))
    else:
        lo, hi = int(m.group(3)), int(m.group(4))
    off = 0
    if f == "a": f, off = "v", 256
    return [(f, off + i) for i in range(lo, hi + 1)]

def split_ops(s):
    out, depth, cur = [], 0, ""
    for ch in s:
        if ch in "[(": depth += 1
        if ch in "])": depth -= 1
        if ch == "," and depth == 0:
            out.append(cur.strip()); cur = ""
        else:
            cur += ch
    if cur.strip(): out.append(cur.strip())
    return out

def mfma_passes(mn):
    if "32x32x16" in mn or "32x32x8" in mn or "32x32x32" in mn: return 8
    if "16x16x32" in mn or "16x16x16" in mn or "16x16x64" in mn: return 4
    raise ValueError("unknown mfma " + mn)

class Ins:
    __slots__ = ("text", "mn", "kind", "w", "r", "srcC", "dpp", "passes", "nops", "storedata", "ab", "sread")
    def __init__(self, text):
        self.text = text
        body = text.split(";")[0].strip()
        parts = body.split(None, 1)
        mn = parts[0]
        self.mn = mn
        rest = parts[1] if len(parts) > 1 else ""
        ops = split_ops(rest)
        mods = ""
        if ops:
            sp = ops[-1].split()
            ops[-1] = sp[0]
            mods = " ".join(sp[1:])
        self.w, self.r, self.srcC, self.ab = [], [], [], []
        self.storedata = []
        self.dpp = ("_dpp" in mn) or ("row_" in mods) or ("quad_perm" in mods)
        self.passes = 0
        self.nops = 1
        R = [parse_reg(o) for o in ops]
        if mn == "v_nop":
            self.kind = "nop"
        elif mn == "s_nop":
            self.kind = "nop"; self.nops = int(ops[0], 0) + 1
        elif mn.startswith("v_mfma") or mn.startswith("v_smfmac"):
            self.kind = "mfma"; self.passes = mfma_passes(mn)
            self.w = R[0]; self.ab = R[1] + R[2]
            if mn.startswith("v_smfmac"):
                self.srcC = R[0]; self.ab = self.ab + R[3]
            else:
                self.srcC = R[3]
            self.r = self.ab + self.srcC
        elif mn.startswith("v_"):
            self.kind = "trans" if mn.replace("_e32", "").replace("_e64", "") in TRANS else "valu"
            if mn.startswith("v_permlane") and "swap" in mn:
                self.w = R[0] + R[1]; self.r = R[0] + R[1]; self.kind = "perm"
            elif mn.startswith("v_cmpx"):
                self.w = R[0] + parse_reg("exec"); self.r = sum(R[1:], [])
            elif mn.startswith(("v_add_co", "v_sub_co", "v_addc_co", "v_subb_co", "v_subrev_co", "v_mad_u64", "v_div_scale")):
                self.w = R[0] + R[1]; self.r = sum(R[2:], [])
            else:
                self.w = R[0]; self.r = sum(R[1:], [])
                if mn.startswith(("v_fmac", "v_pk_fmac", "v_dot2c", "v_writelane")) or self.dpp: self.r = self.r + R[0]
                if mn.startswith(("v_readlane", "v_readfirstlane")): self.kind = "rdlane"
        elif mn.startswith("ds_"):
            self.kind = "ds"
            if mn.startswith(("ds_read", "ds_bpermute", "ds_permute", "ds_swizzle")) or "_rtn" in mn:
                self.w = R[0]; self.r = sum(R[1:], [])
            else:
                self.r = sum(R, [])
        elif mn.startswith(("buffer_", "global_")):
            self.kind = "vmem"
            lds = " lds" in (" " + mods) or "load_lds" in mn
            if mn in ("buffer_inv", "buffer_wbl2"):
                pass
            elif lds:
                self.r = sum(R, []) + parse_reg("m0"); self.kind = "dma"
            elif "load" in mn:
                self.w = R[0]; self.r = sum(R[1:], [])
            else:
                self.r = sum(R, [])
                if "atomic" in mn and "sc0" in mods: self.w = R[0]
                if mn.endswith(("x3", "x4")):
                    self.storedata = R[0] if mn.startswith("buffer_") else R[1]
        elif mn.startswith("s_"):
            self.kind = "salu"
            if mn.startswith(("s_cmp", "s_cbranch", "s_branch", "s_waitcnt", "s_barrier", "s_endpgm", "s_setprio", "s_sleep", "s_bitcmp", "s_setreg")):
                self.r = sum(R, [])
            else:
                self.w = R[0] if R else []; self.r = sum(R[1:], [])
                if "saveexec" in mn: self.w = self.w + parse_reg("exec")
        else:
            raise ValueError("unknown instr " + text)

class Asm:
    def __init__(self):
        self.lines = []
        self._uid = 0
        self.pos = 0
        self.mpos = 0
        self.lastw = {}
        self.lastC = {}
        self.lastS = {}
        self.ninstr = 0
        self.padded = 0
        self.lastm = None
    def _need(self, ins, mbump):
        need = 0
        def req(p, n):
            nonlocal need
            have = self.pos - p - 1
            if n - have > need: need = n - have
        def reqm(p, n):
            nonlocal need
            if max(self.mpos, mbump) - p - 1 >= n: return
            t = n - (self.mpos - p - 1)
            if t > need: need = t
        k = ins.kind
        isvalu = k in ("valu", "trans", "perm", "rdlane")
        for reg in ins.r:
            lw = self.lastw.get(reg)
            if not lw: continue
            pk, p, passes, D = lw
            if reg[0] == "v":
                if pk == "mfma":
                    if k == "mfma":
                        if reg in ins.ab: reqm(p, {4: 8, 8: 12}[passes])
                        elif reg in ins.srcC:
                            if (ins.mn,) + tuple(ins.srcC) == D: pass
                            else: reqm(p, {4: 6, 8: 10}[passes])
                    else:
                        reqm(p, {4: 8, 8: 12}[passes])
                elif pk in ("valu", "trans", "perm", "rdlane"):
                    if k == "mfma": req(p, 2)
                    if k == "perm": req(p, 2)
                    if ins.dpp: req(p, 2)
                    if k == "rdlane": req(p, 1)
                    if pk == "trans" and k != "trans": req(p, 1)
            else:
                if pk in ("valu", "trans", "perm", "rdlane"):
                    if k in ("vmem", "dma"): req(p, 5)
                    elif isvalu:
                        req(p, 4 if ins.mn.startswith(("v_readlane", "v_writelane")) else 2)
                    elif k == "salu": req(p, 1)
                elif pk == "salu" and reg == ("s", 124) and k == "dma": req(p, 1)
        for reg in ins.w:
            lw = self.lastw.get(reg)
            if lw and lw[0] == "mfma" and k != "mfma":
                reqm(lw[1], {4: 8, 8: 12}[lw[2]])
            if lw and lw[0] == "mfma" and k == "mfma" and reg not in ins.srcC:
                reqm(lw[1], {4: 6, 8: 10}[lw[2]])
            if k != "mfma":
                c = self.lastC.get(reg)
                if c: reqm(c[0], {4: 3, 8: 7}[c[1]])
            s = self.lastS.get(reg)
            if s is not None: req(s, 2)
        ex = self.lastw.get(("s", 126))
        if ex and ex[0] in ("valu",):
            if k == "mfma": req(ex[1], 4)
            if ins.dpp: req(ex[1], 5)
            if k in ("perm", "rdlane"): req(ex[1], 4)
        return need
    def _emit(self, text):
        ins = Ins(text)
        mbump = 0
        if ins.kind == "mfma" and self.lastm is not None:
            mbump = self.lastm[0] + self.lastm[1]
        n = self._need(ins, mbump)
        while n > 0:
            t = min(n, 16)
            self.lines.append(f"    s_nop {t-1}")
            self.pos += t; self.mpos += t; n -= t; self.padded += 1
        self.mpos = max(self.mpos, mbump)
        self.lines.append("    " + text)
        for reg in ins.w:
            self.lastw[reg] = (ins.kind, self.mpos if ins.kind == "mfma" else self.pos, ins.passes, (ins.mn,) + tuple(ins.w))
        if ins.kind == "mfma":
            for reg in ins.srcC: self.lastC[reg] = (self.mpos, ins.passes)
            self.lastm = (self.mpos, ins.passes)
        for reg in ins.storedata: self.lastS[reg] = self.pos
        self.pos += ins.nops; self.mpos += ins.nops
        self.ninstr += 1
    def __call__(self, s):
        for ln in s.strip("\n").split("\n"):
            ln = ln.strip()
            if not ln: continue
            if ln.startswith(";"):
                self.lines.append("    " + ln); continue
            if ln.endswith(":"):
                self.label(ln[:-1]); continue
            self._emit(ln)
    def flush(self):
        need = 0
        for reg, (pk, p, passes, D) in self.lastw.items():
            if pk == "mfma": need = max(need, {4: 8, 8: 12}[passes] - (self.mpos - p - 1))
            else:
                if pk in ("valu", "trans", "perm", "rdlane"): n = 5 if reg[0] == "s" else 2
                else: n = 1
                need = max(need, n - (self.pos - p - 1))
        for reg, (p, passes) in self.lastC.items():
            need = max(need, {4: 3, 8: 7}[passes] - (self.mpos - p - 1))
        for reg, p in self.lastS.items():
            need = max(need, 2 - (self.pos - p - 1))
        if need > 0:
            self.lines.append(f"    s_nop {need-1}"); self.pos += need; self.mpos += need
    def label(self, l):
        self.lines.append(l + ":")
    def raw(self, s):
        self.lines.append(s)
    def comment(self, s):
        self.lines.append("    ; " + s)
    def uid(self, p="L"):
        self._uid += 1
        return f"{p}_{self._uid}"
    def text(self):
        return "\n".join(self.lines) + "\n"

def vr(a, n=1):
    if a >= 256:
        a -= 256
        assert a + n <= 256
        return f"a{a}" if n == 1 else f"a[{a}:{a+n-1}]"
    assert a + n <= 256, (a, n)
    return f"v{a}" if n == 1 else f"v[{a}:{a+n-1}]"

def sr(a, n=1):
    return f"s{a}" if n == 1 else f"s[{a}:{a+n-1}]"

def kernel_desc(name, vgpr=512, sgpr=102, accum=256):
    return f""".section .rodata,"a"
.p2align 6
.amdhsa_kernel {name}
  .amdhsa_next_free_vgpr {vgpr}
  .amdhsa_next_free_sgpr {sgpr}
  .amdhsa_accum_offset {accum}
  .amdhsa_group_segment_fixed_size 0
  .amdhsa_kernarg_size 104
  .amdhsa_user_sgpr_count 2
  .amdhsa_user_sgpr_kernarg_segment_ptr 1
  .amdhsa_system_sgpr_workgroup_id_x 1
.end_amdhsa_kernel
"""
```

```python
from asmlib import *
from layout import *
from chain import Cnt, f32bits
from pgemm import *
import math

def task_a2(a, h_sgpr, p_sgpr, NP, dep=None, done=None):
    WSR = f"s[{B_WS}:{B_WS+3}]"
    S_C, S_T, S_QT, S_IT = 44, 45, 46, 47
    S_LO = 48
    lane_fields(a)
    a("s_barrier")
    if dep: dep(a)
    a(f"""
    v_lshlrev_b32 v4, 4, v1
    s_mul_i32 s{B_T0}, s{h_sgpr}, 0x{AIMG:x}
    s_add_u32 s{B_T0}, s{B_T0}, 0x{WS_AKV:x}
    s_mul_i32 s{B_T1}, s{B_WAVE}, {37*1024}
    s_add_u32 s{B_T0}, s{B_T0}, s{B_T1}
    """)
    for blk in range(0, 37, 4):
        a(f"s_add_u32 m0, s{B_T1}, {blk*1024}\ns_add_u32 s{B_T2}, s{B_T0}, {blk*1024}")
        for j in range(min(4, 37 - blk)):
            a(f"buffer_load_dwordx4 v4, {WSR}, s{B_T2} offen offset:{j*1024} sc1 lds")
    c = (18 ** -0.5) * math.log2(math.e)
    a(f"""
    s_mov_b32 s{S_C}, 0x{f32bits(c):x}
    s_mov_b32 s{S_T}, 0x41000000
    s_mov_b32 s{S_LO}, -1
    s_mov_b32 s{S_LO+1}, 0
    v_and_b32 v8, 31, v1
    v_lshlrev_b32 v5, 2, v8
    v_lshrrev_b32 v9, 5, v1
    v_min_u32 v10, 18, v8
    v_mul_u32_u24 v6, 304, v9
    v_lshl_add_u32 v6, v10, 4, v6
    v_mul_u32_u24 v7, 304, v0
    v_add_u32 v7, {AV_OFF + 18*16}, v7
    v_mov_b32 v12, 0x3f803f80
    v_mov_b32 v13, 0x3f803f80
    v_mov_b32 v14, 0x3f803f80
    v_mov_b32 v15, 0x3f803f80
    s_lshl_b32 s{S_QT}, s{p_sgpr}, 2
    s_add_u32 s{S_QT}, s{S_QT}, s{B_WAVE}
    s_waitcnt vmcnt(0)
    s_barrier
    ds_write_b128 v7, v[12:15]
    s_waitcnt lgkmcnt(0)
    s_barrier
    """)
    QM, QT = 16, 20
    KM = (24, 28, 32, 36)
    KT = (40, 44, 48, 52)
    VF = (56, 72)
    P = 88
    O = 104
    S = (120, 152)
    TM, MN, TMP, AL = 184, 185, 186, 187
    AK, AT, AV = 188, 189, 190
    for q in KT:
        a(f"v_mov_b32 v{q+1}, 0\nv_mov_b64 {vr(q+2,2)}, 0")
    a(f"v_mov_b32 v{QT+1}, 0\nv_mov_b64 {vr(QT+2,2)}, 0")
    a.label("L_a2_q")
    a(f"s_cmp_ge_u32 s{S_QT}, 64\ns_cbranch_scc1 L_a2_done")
    ds = Cnt(a, "lgkmcnt", 15)
    a(f"""
    s_lshl_b32 s{B_T0}, s{h_sgpr}, 6
    s_add_u32 s{B_T0}, s{B_T0}, s{S_QT}
    s_lshl_b32 s{B_T1}, s{B_T0}, 10
    s_add_u32 s{B_T1}, s{B_T1}, 0x{WS_AQ:x}
    s_lshl_b32 s{B_T2}, s{B_T0}, 7
    s_add_u32 s{B_T2}, s{B_T2}, 0x{WS_AQ + AQ_TAIL:x}
    buffer_load_dwordx4 {vr(QM,4)}, v4, {WSR}, s{B_T1} offen sc1
    buffer_load_dword v{TMP}, v5, {WSR}, s{B_T2} offen sc1
    v_mov_b32 v{AK}, v4
    v_add_u32 v{AT}, {AK_TAIL}, v5
    v_add_u32 v{AV}, {AV_OFF}, v6
    v_mov_b32 v{MN}, 0x7149f2ca
    s_mov_b32 s{S_IT}, 0
    """)
    for i in range(0, 16, 2): a(f"v_mov_b64 {vr(O+i,2)}, 0")
    for i in range(0, 16, 2): a(f"v_mov_b64 {vr(P+i,2)}, 0")
    def rdK(buf, off):
        out = []
        for t in range(2):
            out.append((f"ds_read_b128 {vr(KM[buf*2+t],4)}, v{AK} offset:{off*2048 + t*1024}", ("k", buf)))
            out.append((f"ds_read_b32 v{KT[buf*2+t]}, v{AT} offset:{off*256 + t*128}", ("k", buf)))
        return out
    def rdV(buf, off):
        return [(f"ds_read_b128 {vr(VF[buf]+4*j,4)}, v{AV} offset:{off*2432 + j*608}", ("v", buf)) for j in range(4)]
    def emit(lst):
        for s, tg in lst: a(s); ds.issue(tg)
    def smm(buf):
        out = []
        for t in range(2):
            d = vr(S[buf] + 16*t, 16)
            out.append(f"v_mfma_f32_32x32x16_bf16 {d}, {vr(KM[buf*2+t],4)}, {vr(QM,4)}, 0")
            out.append(f"v_mfma_f32_32x32x16_bf16 {d}, {vr(KT[buf*2+t],4)}, {vr(QT,4)}, {d}")
        return out
    def pvm(buf):
        return [f"v_mfma_f32_32x32x16_bf16 {vr(O,16)}, {vr(VF[buf]+4*j,4)}, {vr(P+4*j,4)}, {vr(O,16)}" for j in range(4)]
    emit(rdK(0, 0)); emit(rdK(1, 1)); emit(rdV(1, 0))
    a(f"s_waitcnt vmcnt(0)\nv_cndmask_b32 v{QT}, 0, v{TMP}, s[{S_LO}:{S_LO+1}]")
    ds.wait(("k", 0))
    for s in smm(0): a(s)
    a.flush()
    a.label("L_a2_loop")
    for cur in range(2):
        nxt = 1 - cur
        Sc = S[cur]
        mx = [f"v_max3_f32 v{TM}, v{Sc}, v{Sc+1}, v{Sc+2}"] + [f"v_max3_f32 v{TM if i % 2 == 0 else TMP}, v{Sc+1+2*i}, v{Sc+2+2*i}, v{TM if i % 2 == 0 else TMP}" for i in range(1, 15)]
        mx[1] = f"v_max_f32 v{TMP}, v{Sc+3}, v{Sc+4}"
        mx += [f"v_max3_f32 v{TM}, v{Sc+31}, v{TM}, v{TMP}", f"v_fma_f32 v{TMP}, v{TM}, s{S_C}, v{MN}", f"v_cmp_lt_f32 vcc, s{S_T}, v{TMP}"]
        ds.wait(("v", nxt))
        pv = pvm(nxt); rv = rdV(cur, cur)
        for i, s in enumerate(mx):
            if i % 4 == 0 and pv:
                a(pv.pop(0)); emit([rv.pop(0)])
            a(s)
        ds.wait(("k", nxt))
        sm = smm(nxt); rk = rdK(cur, cur + 2)
        a(sm.pop(0))
        a(f"s_cbranch_vccnz L_a2_resc{cur}")
        a.label(f"L_a2_back{cur}")
        ex = []
        for i in range(0, 32, 2):
            ex += [f"v_fma_f32 v{Sc+i}, v{Sc+i}, s{S_C}, v{MN}", f"v_fma_f32 v{Sc+i+1}, v{Sc+i+1}, s{S_C}, v{MN}",
                   f"v_exp_f32 v{Sc+i}, v{Sc+i}", f"v_exp_f32 v{Sc+i+1}, v{Sc+i+1}"]
            if i >= 2: ex.append(f"v_cvt_pk_bf16_f32 v{P+(i-2)//2}, v{Sc+i-2}, v{Sc+i-1}")
        ex.append(f"v_cvt_pk_bf16_f32 v{P+15}, v{Sc+30}, v{Sc+31}")
        for i, s in enumerate(ex):
            a(s)
            if i % 10 == 9:
                if sm: a(sm.pop(0)); emit([rk.pop(0)])
                elif rk: emit([rk.pop(0)])
        assert not sm and not rk
    a(f"""
    v_add_u32 v{AK}, 4096, v{AK}
    v_add_u32 v{AT}, 512, v{AT}
    v_add_u32 v{AV}, 4864, v{AV}
    s_add_u32 s{S_IT}, s{S_IT}, 1
    s_cmp_lt_u32 s{S_IT}, 16
    """)
    a.flush()
    a("s_cbranch_scc1 L_a2_loop")
    a("s_waitcnt lgkmcnt(0)"); ds.q = []
    for s in pvm(1): a(s)
    a(f"""
    v_rcp_f32 v{TMP}, v{O+10}
    v_and_b32 v8, 31, v1
    v_mul_u32_u24 v8, 1152, v8
    v_lshrrev_b32 v9, 5, v1
    v_lshl_add_u32 v8, v9, 3, v8
    s_mul_i32 s{B_T0}, s{S_QT}, {32*1152}
    s_mul_i32 s{B_T1}, s{h_sgpr}, 36
    s_add_u32 s{B_T0}, s{B_T0}, s{B_T1}
    s_add_u32 s{B_T0}, s{B_T0}, 0x{WS_OA:x}
    """)
    for i in range(10): a(f"v_mul_f32 v{O+i}, v{O+i}, v{TMP}")
    for i in range(5): a(f"v_cvt_pk_bf16_f32 v{P+i}, v{O+2*i}, v{O+2*i+1}")
    a(f"""
    buffer_store_dwordx2 {vr(P,2)}, v8, {WSR}, s{B_T0} offen sc1
    buffer_store_dwordx2 {vr(P+2,2)}, v8, {WSR}, s{B_T0} offen offset:16 sc1
    s_mov_b64 exec, s[{S_LO}:{S_LO+1}]
    buffer_store_dword v{P+4}, v8, {WSR}, s{B_T0} offen offset:32 sc1
    s_mov_b64 exec, -1
    s_add_u32 s{S_QT}, s{S_QT}, {4*NP}
    """)
    a.flush()
    a("s_branch L_a2_q")
    for cur in range(2):
        a.label(f"L_a2_resc{cur}")
        a("s_nop 15")
        a(f"""
        v_mov_b32 v{TMP}, v{TM}
        v_permlane32_swap_b32 v{TM}, v{TMP}
        v_max_f32 v{TM}, v{TM}, v{TMP}
        v_mul_f32 v{TM}, s{S_C}, v{TM}
        v_max_f32 v{TM}, v{TM}, -v{MN}
        v_add_f32 v{AL}, v{MN}, v{TM}
        v_exp_f32 v{AL}, -v{AL}
        v_sub_f32 v{MN}, 0, v{TM}
        """)
        for i in range(16): a(f"v_mul_f32 v{O+i}, v{O+i}, v{AL}")
        a.flush()
        a(f"s_branch L_a2_back{cur}")
    a.label("L_a2_done")
    a("s_waitcnt vmcnt(0)\ns_barrier")
    if done: done(a)
```

```python
from asmlib import *
from layout import *
from chain import Cnt, f32bits
from pgemm import *
import math

def task_b2(a, h_sgpr, s0_expr, sstep, wait_fn=None, done_fn=None, lds_base=0):
    WSR = f"s[{B_WS}:{B_WS+3}]"
    S_C, S_S, S_B = 44, B_P2, 45
    S_M = 48
    S_LO = 56
    lane_fields(a)
    a("s_barrier")
    c = (128 ** -0.5) * math.log2(math.e)
    a(f"""
    s_mov_b32 s{S_C}, 0x{f32bits(c):x}
    s_mov_b32 s{S_LO}, -1
    s_mov_b32 s{S_LO+1}, 0
    v_lshlrev_b32 v4, 4, v1
    v_and_b32 v8, 1, v2
    v_lshlrev_b32 v5, 4, v3
    v_lshl_add_u32 v5, v8, 3, v5
    v_lshrrev_b32 v8, 2, v3
    v_and_b32 v9, 1, v8
    v_lshrrev_b32 v8, 1, v8
    v_lshlrev_b32 v6, 6, v2
    v_lshl_add_u32 v6, v9, 4, v6
    v_lshl_add_u32 v6, v8, 8, v6
    v_and_b32 v9, 1, v1
    v_lshl_add_u32 v6, v9, 3, v6
    s_lshl_b32 s{S_B}, s{B_WAVE}, 11
    s_add_u32 s{S_B}, s{S_B}, {lds_base}
    v_add_u32 v6, s{S_B}, v6
    v_lshlrev_b32 v8, 2, v2
    v_mov_b32 v7, 0xff800000
    v_and_b32 v10, 0x200, v4
    v_add_u32 v10, v10, v4
    v_add_u32 v10, 0x200, v10
    """)
    for r in range(4):
        a(f"v_add_u32 v9, {r}, v8\nv_cmp_le_u32 s[{S_M+2*r}:{S_M+2*r+1}], v9, v3")
    Q, K, V, VM, KM = 16, 48, 80, 112, 128
    SX = {(0, 0): 144, (0, 1): 148, (1, 1): 152}; SM = (156, 160)
    PX = (164, 168); PM = (172, 174)
    T0, T1, T2 = 176, 177, 178
    O = 180
    a.label("L_b2_loop")
    a(f"s_cmp_ge_u32 s{S_S}, 64\ns_cbranch_scc1 L_b2_done")
    a(f"""
    s_lshl_b32 s{B_T0}, s{S_S}, 5
    s_add_u32 s{B_T0}, s{B_T0}, s{h_sgpr}
    s_lshl_b32 s{B_T3}, s{B_T0}, 12
    s_lshl_b32 s{B_T0}, s{B_T0}, 13
    """)
    for base, R in ((WS_QX, Q), (WS_KX, K), (WS_VX, V)):
        for hh in range(2):
            a(f"s_add_u32 s{B_T1}, s{B_T0}, 0x{base + hh*4096:x}")
            for j in range(4):
                a(f"buffer_load_dwordx4 {vr(R + 16*hh + 4*j, 4)}, v4, {WSR}, s{B_T1} offen offset:{j*1024} sc1")
    a("s_waitcnt vmcnt(8)")
    for kk in range(4):
        for (kt, qt), d in SX.items():
            a(f"v_mfma_f32_16x16x32_bf16 {vr(d,4)}, {vr(K+16*kt+4*kk,4)}, {vr(Q+16*qt+4*kk,4)}, {'0' if kk == 0 else vr(d,4)}")
    for d in (SX[(0, 0)], SX[(1, 1)]):
        for r in range(4):
            a(f"v_cndmask_b32 v{d+r}, v7, v{d+r}, s[{S_M+2*r}:{S_M+2*r+1}]")
    if wait_fn: wait_fn(a)
    a(f"""
    s_add_u32 s{B_T1}, s{B_T3}, 0x{WS_KVM:x}
    s_mov_b32 m0, s{S_B}
    s_add_u32 s{B_T2}, s{B_T1}, 1024
    buffer_load_dwordx4 v10, {WSR}, s{B_T1} offen sc1 lds
    buffer_load_dwordx4 v10, {WSR}, s{B_T2} offen offset:1024 sc1 lds
    """)
    for et in range(8):
        a(f"buffer_load_dwordx2 {vr(VM+2*et,2)}, v5, {WSR}, s{B_T1} offen offset:{(et>>1)*1024 + (et&1)*256} sc1")
    a("s_waitcnt vmcnt(8)")
    for kk in range(4):
        for p in range(2):
            a(f"ds_read_b64_tr_b16 {vr(KM+4*kk+2*p,2)}, v6 offset:{kk*512 + p*32}")
    a("s_waitcnt lgkmcnt(0)")
    for kk in range(4):
        for qt in range(2):
            a(f"v_mfma_f32_16x16x32_bf16 {vr(SM[qt],4)}, {vr(KM+4*kk,4)}, {vr(Q+16*qt+4*kk,4)}, {'0' if kk == 0 else vr(SM[qt],4)}")
    def xred(op, t):
        a(f"""v_mov_b32 v{T2}, v{t}
        v_permlane32_swap_b32 v{t}, v{T2}
        {op} v{t}, v{t}, v{T2}
        v_mov_b32 v{T2}, v{t}
        v_permlane16_swap_b32 v{t}, v{T2}
        {op} v{t}, v{t}, v{T2}""")
    for qt in range(2):
        for r in range(4):
            a(f"v_cndmask_b32 v{SM[qt]+r}, v7, v{SM[qt]+r}, s[{S_LO}:{S_LO+1}]")
        regs = [SM[qt] + r for r in range(4)] + [SX[(0, qt)] + r for r in range(4)]
        if qt == 1: regs += [SX[(1, 1)] + r for r in range(4)]
        a(f"v_max_f32 v{T0}, v{regs[0]}, v{regs[1]}")
        for i in range(2, len(regs), 2): a(f"v_max3_f32 v{T0}, v{regs[i]}, v{regs[i+1]}, v{T0}")
        xred("v_max_f32", T0)
        a(f"v_mul_f32 v{T0}, s{S_C}, v{T0}")
        for r in regs: a(f"v_fma_f32 v{r}, v{r}, s{S_C}, -v{T0}")
        for r in regs: a(f"v_exp_f32 v{r}, v{r}")
        a(f"v_add_f32 v{T1}, v{regs[0]}, v{regs[1]}")
        for r in regs[2:]: a(f"v_add_f32 v{T1}, v{T1}, v{r}")
        xred("v_add_f32", T1)
        a(f"v_rcp_f32 v{T1}, v{T1}")
        for r in regs: a(f"v_mul_f32 v{r}, v{r}, v{T1}")
        dst = [PM[qt], PM[qt] + 1, PX[qt], PX[qt] + 1, PX[qt] + 2, PX[qt] + 3]
        for i in range(0, len(regs), 2): a(f"v_cvt_pk_bf16_f32 v{dst[i//2]}, v{regs[i]}, v{regs[i+1]}")
        if qt == 0: a(f"v_mov_b64 {vr(PX[0]+2,2)}, 0")
    a("s_waitcnt vmcnt(0)")
    for qt in range(2):
        for et in range(8):
            a(f"v_mfma_f32_16x16x32_bf16 {vr(O+(qt*8+et)*4,4)}, {vr(V+4*et,4)}, {vr(PX[qt],4)}, 0")
    for qt in range(2):
        for et in range(8):
            d = vr(O + (qt*8+et)*4, 4)
            a(f"v_mfma_f32_16x16x16_bf16 {d}, {vr(VM+2*et,2)}, {vr(PM[qt],2)}, {d}")
    a(f"""
    s_lshl_b32 s{B_T0}, s{S_S}, 6
    s_add_u32 s{B_T0}, s{B_T0}, s{h_sgpr}
    s_lshl_b32 s{B_T0}, s{B_T0}, 12
    s_add_u32 s{B_T0}, s{B_T0}, 0x{WS_OB:x}
    s_add_u32 s{B_T1}, s{B_T0}, 0x20000
    """)
    for qt in range(2):
        for ep in range(4):
            o = O + (qt*8 + 2*ep)*4; q = Q + (qt*4+ep)*4
            for i in range(4): a(f"v_cvt_pk_bf16_f32 v{q+i}, v{o+2*i}, v{o+2*i+1}")
            a(f"buffer_store_dwordx4 {vr(q,4)}, v4, {WSR}, s{B_T0 if qt == 0 else B_T1} offen offset:{ep*1024} sc1")
    a("s_waitcnt vmcnt(0)")
    if done_fn: done_fn(a)
    a(f"s_add_u32 s{S_S}, s{S_S}, {sstep}")
    a.flush()
    a("s_branch L_b2_loop")
    a.label("L_b2_done")

def task_b3(a, ct_sgpr, rg_sgpr, NG, wait_fn=None):
    WSR = f"s[{B_WS}:{B_WS+3}]"
    lane_fields(a)
    a("s_barrier")
    srd(a, B_W, B_PTR + 16, 576 * 4096 * 2)
    a(f"""
    s_mul_i32 s{B_WOFF}, s{B_WAVE}, {1024*1152}
    s_mul_i32 s{B_T0}, s{ct_sgpr}, 96
    s_add_u32 s{B_WOFF}, s{B_WOFF}, s{B_T0}
    s_mov_b32 s{B_RB}, s{rg_sgpr}
    """)
    pr = lambda t, ks: 128 + (ks * 3 + t) * 4
    pg_load_panel(a, 3, 1152, nks=32, pr=pr, perm=True, stg=16384, stgw=36864)
    XR = 32; NR = 20; ACC = 16
    a(f"""
    v_lshlrev_b32 v4, 4, v1
    s_mul_i32 s{B_T0}, s{B_WAVE}, 3072
    v_add_u32 v5, s{B_T0}, v4
    s_lshl_b32 s{B_T0}, s{B_WAVE}, 10
    v_add_u32 v6, s{B_T0}, v4
    v_mul_u32_u24 v7, 2304, v3
    v_lshl_add_u32 v7, v2, 3, v7
    """)
    a.label("L_b3_loop")
    a(f"s_cmp_ge_u32 s{B_RB}, 128\ns_cbranch_scc1 L_b3_done")
    if wait_fn: wait_fn(a)
    vm = Cnt(a, "vmcnt", 63)
    a(f"""
    s_lshl_b32 s{B_T0}, s{B_RB}, 2
    s_add_u32 s{B_T0}, s{B_T0}, s{B_WAVE}
    s_lshl_b32 s{B_T0}, s{B_T0}, 15
    s_add_u32 s{B_T0}, s{B_T0}, 0x{WS_OB:x}
    """)
    def ld(ks):
        if ks % 4 == 0 and ks: a(f"s_add_u32 s{B_T0}, s{B_T0}, 4096")
        a(f"buffer_load_dwordx4 {vr(XR + 4*(ks % NR),4)}, v4, {WSR}, s{B_T0} offen offset:{(ks%4)*1024} sc1"); vm.issue(ks)
    for ks in range(NR): ld(ks)
    for ks in range(32):
        vm.wait(ks)
        for t in range(3):
            d = vr(ACC + 4*t, 4)
            a(f"v_mfma_f32_16x16x32_bf16 {d}, {vr(pr(t,ks),4)}, {vr(XR + 4*(ks % NR),4)}, {'0' if ks == 0 else d}")
        if ks + NR < 32: ld(ks + NR)
    a("s_barrier")
    for t in range(3):
        a(f"ds_write_b128 v5, {vr(ACC+4*t,4)} offset:{t*1024}")
    a("s_waitcnt lgkmcnt(0)\ns_barrier")
    a(f"s_cmp_eq_u32 s{B_WAVE}, 3\ns_cbranch_scc1 L_b3_next")
    for wv in range(4):
        a(f"ds_read_b128 {vr(XR+4*wv,4)}, v6 offset:{wv*3072}")
    a(f"""
    s_mul_i32 s{B_T0}, s{B_RB}, {16*2304}
    s_mul_i32 s{B_T1}, s{ct_sgpr}, 96
    s_add_u32 s{B_T0}, s{B_T0}, s{B_T1}
    s_lshl_b32 s{B_T1}, s{B_WAVE}, 5
    s_add_u32 s{B_T0}, s{B_T0}, s{B_T1}
    s_waitcnt lgkmcnt(0)
    """)
    for i in range(4):
        a(f"v_add_f32 v{XR+i}, v{XR+i}, v{XR+4+i}\nv_add_f32 v{XR+8+i}, v{XR+8+i}, v{XR+12+i}\nv_add_f32 v{XR+i}, v{XR+i}, v{XR+8+i}")
    a(f"""
    v_cvt_pk_bf16_f32 v28, v{XR}, v{XR+1}
    v_cvt_pk_bf16_f32 v29, v{XR+2}, v{XR+3}
    buffer_store_dwordx2 v[28:29], v7, s[{B_OUT}:{B_OUT+3}], s{B_T0} offen offset:1152
    """)
    a.label("L_b3_next")
    a(f"s_add_u32 s{B_RB}, s{B_RB}, {NG}")
    a.flush()
    a("s_branch L_b3_loop")
    a.label("L_b3_done")
```

```python
from asmlib import *
from layout import *
import math, struct

class Cnt:
    def __init__(self, a, name, maxv):
        self.a, self.name, self.maxv = a, name, maxv
        self.q = []
    def issue(self, tag=None):
        self.q.append(tag)
    def wait(self, tag):
        idx = [i for i, t in enumerate(self.q) if t == tag]
        if not idx: return
        n = len(self.q) - 1 - idx[-1]
        n = min(n, self.maxv)
        self.a(f"s_waitcnt {self.name}({n})")
        self.q = self.q[len(self.q) - n:] if n else []
    def wait_all(self):
        self.a(f"s_waitcnt {self.name}(0)")
        self.q = []

def f32bits(x): return struct.unpack("<I", struct.pack("<f", x))[0]

S_WS, S_DBG, S_WQ, S_WK, S_WV, S_WO, S_M0 = 8, 12, 16, 20, 24, 28, 32
S_H, S_W, S_STEP = 36, 37, 38
S_E1, S_E2A, S_E2B, S_E2C = 39, 40, 41, 42
S_T0, S_T1, S_T2, S_T3 = 43, 44, 45, 46
S_UNIT = 47
S_KV = 48
S_SPIN = 49
S_C = 50
S_SENT = 51
S_PUBM = 52
S_MP = 54
S_T4 = 55
S_C8 = 56
S_SEL = 58
S_ODD = 66
S_LIMLO, S_LIMHI = 68, 69
S_ST = 70
S_CLRM = 88
S_MODE = 90
S_KVOK = 91

V_L16, V_AW, V_MT0, V_MT1, V_QW, V_PX, V_OW, V_E1A, V_PM, V_PUB, V_IDX, V_PW, V_X12, V_X13, V_X14, V_X15 = range(16)
V_KT = V_PUB

OWN = {0: [0, 1], 1: [2, 3], 2: [4, 5, 6], 3: [7, 8]}
def korder(w):
    return OWN[w] + [k for k in range(9) if k not in OWN[w]]
LDS_QJ = (2, 4, 6); LDS_KJ = (6,); LDS_VJ = (3, 4)

def frag_maps(w):
    reg, lds = {}, {}
    chunks_reg, chunks_lds = [], []
    ko = korder(w)
    for mat, L in (("q", LDS_QJ), ("k", LDS_KJ), ("v", LDS_VJ)):
        for j, kap in enumerate(ko):
            ch = [(mat, 0, kap), (mat, 1, kap)]
            (chunks_lds if j in L else chunks_reg).append(ch)
    for kap in range(2):
        for tp in range(4):
            ch = [("o", 2 * tp, kap), ("o", 2 * tp + 1, kap)]
            (chunks_lds if tp == 0 else chunks_reg).append(ch)
    chunks_reg.append([("o", 8, 0), ("o", 8, 1)])
    r = 64
    for ch in chunks_reg:
        for f in ch:
            reg[f] = r; r += 8
    assert r == 512, r
    for i, ch in enumerate(chunks_lds):
        for j, f in enumerate(ch):
            lds[f] = 2 * i + j
    assert len(chunks_lds) == 8
    return reg, lds, chunks_reg, chunks_lds

def srd(a, s, ptr, nbytes):
    a(f"s_mov_b32 s{s}, s{ptr}\ns_and_b32 s{s+1}, s{ptr+1}, 0xffff\ns_mov_b32 s{s+2}, 0x{nbytes:x}\ns_mov_b32 s{s+3}, 0x20000")

def chain_setup(a, cfg):
    a(f"""
    s_load_dwordx4 s[92:95], s[0:1], 32
    s_load_dwordx4 s[96:99], s[0:1], 48
    s_load_dwordx2 s[100:101], s[0:1], 64
    s_load_dwordx4 s[4:7], s[0:1], 88
    v_lshrrev_b32 v16, 6, v0
    v_and_b32 v17, 63, v0
    v_readfirstlane_b32 s{S_W}, v16
    s_waitcnt lgkmcnt(0)
    """)
    srd(a, S_M0, 92, 8 * 576 * 2)
    srd(a, S_WQ, 94, 576 * 4096 * 2)
    srd(a, S_WK, 96, 576 * 4096 * 2)
    srd(a, S_WV, 98, 576 * 4096 * 2)
    srd(a, S_WO, 100, 576 * 4096 * 2)
    srd(a, S_DBG, 4, 256)
    srd(a, S_WS, 6, WS_SIZE)
    cb = f32bits((128 ** -0.5) * math.log2(math.e))
    a(f"""
    s_mov_b32 s{S_C}, 0x{cb:x}
    s_mov_b32 s{S_SENT}, 0x{SENT:x}
    s_mov_b32 s{S_PUBM}, 0x00ff00ff
    s_mov_b32 s{S_PUBM+1}, 0
    s_mov_b32 s{S_C8}, 0x00ff00ff
    s_mov_b32 s{S_C8+1}, 0x00ff00ff
    s_mov_b32 s{S_ODD}, 0xaaaaaaaa
    s_mov_b32 s{S_ODD+1}, 0xaaaaaaaa
    s_mov_b32 s{S_LIMLO}, 0x2b800000
    s_mov_b32 s{S_LIMHI}, 0x53800000
    s_mov_b32 s{S_CLRM}, 0x3ffff
    s_mov_b32 s{S_CLRM+1}, 0
    s_mov_b32 s{S_ST}, 0xcccccccc
    s_mov_b32 s{S_ST+1}, 0xcccccccc
    """)
    for j in range(4):
        m = 0x00030003 << (2 * j)
        a(f"s_mov_b32 s{S_SEL+2*j}, 0x{m:x}\ns_mov_b32 s{S_SEL+2*j+1}, 0x{m:x}")
    a(f"""
    v_lshrrev_b32 v18, 4, v17
    v_and_b32 v19, 15, v17
    v_lshrrev_b32 v20, 5, v17
    v_and_b32 v21, 1, v18
    v_lshrrev_b32 v22, 2, v19
    v_and_b32 v23, 3, v17
    v_lshlrev_b32 v{V_L16}, 4, v17
    s_lshl_b32 s{S_T0}, s{S_W}, 15
    s_add_u32 s{S_T0}, s{S_T0}, {L_W}
    v_add_u32 v{V_AW}, s{S_T0}, v{V_L16}
    v_lshlrev_b32 v24, 9, v20
    v_lshlrev_b32 v25, 7, v23
    v_lshlrev_b32 v26, 6, v21
    v_add3_u32 v24, v24, v25, v26
    v_lshlrev_b32 v25, 3, v22
    v_add_u32 v24, v24, v25
    v_lshrrev_b32 v25, 3, v24
    v_and_b32 v25, 0x20, v25
    v_xor_b32 v{V_MT0}, v24, v25
    v_xor_b32 v{V_MT1}, 0x20, v{V_MT0}
    v_lshlrev_b32 v24, 3, v17
    v_lshrrev_b32 v25, 3, v24
    v_and_b32 v25, 0x20, v25
    v_xor_b32 v{V_QW}, v24, v25
    ; aPw = c*16 + g*4
    v_lshlrev_b32 v24, 4, v19
    v_lshlrev_b32 v25, 2, v18
    v_add_u32 v{V_PW}, v24, v25
    ; aPx = g*64 + r*16 + (c'&1)*8
    v_lshlrev_b32 v24, 6, v18
    v_lshlrev_b32 v26, 4, v22
    v_and_b32 v27, 1, v17
    v_lshlrev_b32 v27, 3, v27
    v_add3_u32 v{V_PX}, v24, v26, v27
    ; aPm = (2g + (r&1))*16 + (c'&1)*8
    v_lshlrev_b32 v24, 5, v18
    v_and_b32 v26, 1, v22
    v_lshlrev_b32 v26, 4, v26
    v_add3_u32 v{V_PM}, v24, v26, v27
    ; aOw = L_O + w*512 + r'*16 + g*4 ; r' = 4*((c&7)>>1) + 2*(c>>3) + (c&1)
    s_lshl_b32 s{S_T0}, s{S_W}, 9
    s_add_u32 s{S_T0}, s{S_T0}, {L_O}
    v_bfe_u32 v24, v17, 1, 2
    v_lshlrev_b32 v24, 6, v24
    v_bfe_u32 v26, v17, 3, 1
    v_lshlrev_b32 v26, 5, v26
    v_add3_u32 v24, v24, v26, v25
    v_lshlrev_b32 v26, 1, v27
    v_add3_u32 v{V_OW}, v24, v26, s{S_T0}
    v_mov_b32 v24, 0xeeeeeeee
    v_mov_b32 v25, 0x44444444
    v_cndmask_b32 v{V_IDX}, v25, v24, s[{S_ST}:{S_ST+1}]
    ; e1a = g*4096 + c*8 + h*128
    v_lshlrev_b32 v24, 12, v18
    v_lshlrev_b32 v25, 3, v19
    v_add_u32 v24, v24, v25
    s_lshl_b32 s{S_T1}, s{S_H}, 7
    v_add_u32 v{V_E1A}, s{S_T1}, v24
    s_lshl_b32 s{S_T0}, s{S_W}, 5
    s_add_u32 s{S_T0}, s{S_T0}, s{S_H}
    s_lshl_b32 s{S_UNIT}, s{S_T0}, 12
    s_lshl_b32 s{S_T1}, s{S_T0}, 7
    v_and_b32 v24, 7, v17
    v_lshlrev_b32 v24, 4, v24
    v_lshlrev_b32 v25, 3, v21
    v_add3_u32 v24, v24, v25, s{S_T1}
    v_lshrrev_b32 v25, 3, v24
    v_and_b32 v25, 0x20, v25
    v_xor_b32 v{V_PUB}, v24, v25
    """)

def chain_prologue(a, w, cfg):
    REG, LDSF, CH_REG, CH_LDS = frag_maps(w)
    vm = Cnt(a, "vmcnt", 63)
    a(f"""
    v_bfe_u32 v28, v17, 1, 4
    v_and_b32 v29, 1, v17
    v_lshlrev_b32 v29, 4, v29
    v_lshlrev_b32 v30, 5, v20
    v_lshlrev_b32 v24, 13, v28
    v_add3_u32 v24, v24, v29, v30
    v_mul_u32_u24 v25, 1152, v28
    v_add_u32 v26, v25, v29
    v_add3_u32 v25, v25, v29, v30
    v_mul_u32_u24 v30, {64*1152}, v20
    v_add_u32 v26, v26, v30
    v_lshlrev_b32 v31, 10, v20
    v_lshlrev_b32 v28, 8, v21
    v_lshlrev_b32 v29, 5, v22
    v_add3_u32 v31, v31, v28, v29
    v_lshlrev_b32 v28, 3, v23
    v_add_u32 v31, v31, v28
    v_add_u32 v31, {L_W + w*0x8000}, v31
    v_lshrrev_b32 v27, 1, v22
    v_lshlrev_b32 v27, 10, v27
    v_lshlrev_b32 v29, 7, v18
    v_add3_u32 v27, v27, v29, v28
    v_and_b32 v29, 1, v22
    v_lshlrev_b32 v29, 5, v29
    v_add_u32 v27, v27, v29
    v_add_u32 v27, {L_W + w*0x8000}, v27
    s_lshl_b32 s{S_T2}, s{S_H}, 8
    s_add_u32 s{S_T2}, s{S_T2}, {w*64}
    s_mul_i32 s{S_T3}, s{S_H}, {128*1152}
    """)
    chunks = CH_REG + CH_LDS
    nreg = len(CH_REG)
    slot = {i: (i - nreg) % 8 for i in range(len(chunks))}
    def issue(i):
        ch = chunks[i]; mat, t, kap = ch[0]
        for j in range(4):
            if mat in "qkv":
                srdn = {"q": S_WQ, "k": S_WK, "v": S_WV}[mat]
                off = (64 * kap + 16 * j) * 8192; base = S_T2; vo = 24
            elif t == 8:
                srdn = S_WO; off = (16 * j) * 1152 + (32 + w) * 32; base = S_T3; vo = 26
            else:
                srdn = S_WO; off = (64 * kap + 16 * j) * 1152 + (w + 4 * (t >> 1)) * 64; base = S_T3; vo = 25
            a(f"s_mov_b32 m0, 0x{L_W + w*0x8000 + slot[i]*4096 + j*1024:x}")
            a(f"s_add_u32 s{S_T0}, s{base}, 0x{off:x}")
            a(f"buffer_load_dwordx4 v{vo}, s[{srdn}:{srdn+3}], s{S_T0} offen lds")
            vm.issue(("ch", i))
    def consume(i):
        ch = chunks[i]
        vm.wait(("ch", i))
        for sel, f in enumerate(ch):
            dst = REG[f] if f in REG else 32 + 8 * sel
            for p in range(4):
                if f[0] == "o":
                    a(f"ds_read_b64_tr_b16 {vr(dst+2*p,2)}, v31 offset:{slot[i]*4096 + (p>>1)*2048 + sel*512 + (p&1)*128}")
                else:
                    a(f"ds_read_b64_tr_b16 {vr(dst+2*p,2)}, v27 offset:{slot[i]*4096 + (p>>1)*2048 + sel*512 + (p&1)*64}")
        a("s_waitcnt lgkmcnt(0)")
        if ch[0] in LDSF:
            for sel, f in enumerate(ch):
                assert LDSF[f] == 2 * slot[i] + sel
                for hf in range(2):
                    a(f"ds_write_b128 v{V_AW}, {vr(32+8*sel+4*hf,4)} offset:{LDSF[f]*2048 + hf*1024}")
            a("s_waitcnt lgkmcnt(0)")
    a(f"""
    v_lshlrev_b32 v28, 1, v17
    v_lshlrev_b32 v29, 9, v20
    v_lshlrev_b32 v30, 3, v19
    v_add_u32 v29, v29, v30
    v_lshlrev_b32 v30, 2, v21
    v_add_u32 v29, v29, v30
    v_xor_b32 v29, {(w>>1)*32}, v29
    """)
    for rr in range(2):
        i = 2 * w + rr
        a(f"s_mov_b32 s{S_T0}, {i*1152}")
        for j in range(9):
            a(f"buffer_load_ushort v{32+rr*9+j}, v28, s[{S_M0}:{S_M0+3}], s{S_T0} offen offset:{j*128}")
            vm.issue("m0")
    for i in range(8): issue(i)
    vm.wait("m0")
    for rr in range(2):
        for j in range(9):
            a(f"ds_write_b16 v29, v{32+rr*9+j} offset:{L_M + j*1024 + w*128 + rr*2}")
    a("s_waitcnt lgkmcnt(0)")
    if w == 3:
        a(f"""
        v_lshlrev_b32 v28, 6, v18
        v_and_b32 v29, 1, v22
        v_lshlrev_b32 v29, 4, v29
        v_lshrrev_b32 v30, 1, v22
        v_lshlrev_b32 v30, 8, v30
        v_add3_u32 v28, v28, v29, v30
        v_and_b32 v30, 1, v17
        v_lshlrev_b32 v30, 3, v30
        v_add_u32 v{V_KT}, v28, v30
        v_lshlrev_b32 v{V_X13}, 7, v17
        """)
    clr = []
    if w == 2:
        for i in range(4): a(f"v_mov_b32 v{12+i}, s{S_SENT}")
        for sl in range(2):
            for j in range(9): clr.append((9216, WS_E1 + sl * E1SLOT + j * 1024, False))
        for sl in range(3): clr.append((288, WS_E2 + sl * E2SLOT, True))
    def do_clr(n):
        for _ in range(n):
            if not clr: return
            mul, off, masked = clr.pop(0)
            a(f"s_mul_i32 s{S_T1}, s{S_H}, {mul}\ns_add_u32 s{S_T1}, s{S_T1}, 0x{off:x}")
            if masked: a(f"s_mov_b64 exec, s[{S_CLRM}:{S_CLRM+1}]")
            a(f"buffer_store_dwordx4 v[12:15], v{V_L16}, s[{S_WS}:{S_WS+3}], s{S_T1} offen sc1")
            if masked: a("s_mov_b64 exec, -1")
            vm.issue("clr")
    arrived = False
    for i in range(len(chunks)):
        consume(i)
        if i + 8 < len(chunks): issue(i + 8)
        do_clr(4)
        if w == 2 and i == 12:
            assert not clr
            vm.wait("clr")
            a(f"""
            s_getreg_b32 s{S_T0}, hwreg(HW_REG_XCC_ID)
            s_and_b32 s{S_T0}, s{S_T0}, 7
            s_lshl_b32 s{S_T0}, s{S_T0}, 3
            s_lshl_b64 s[{S_ST}:{S_ST+1}], 1, s{S_T0}
            v_mov_b32 v28, s{S_ST}
            v_mov_b32 v29, s{S_ST+1}
            v_mov_b32 v30, 0
            s_mov_b64 exec, 1
            buffer_atomic_add_x2 v[28:29], v30, s[{S_DBG}:{S_DBG+3}], 0 offen
            s_mov_b64 exec, -1
            """)
            vm.issue("at")
    a(f"""
    s_mov_b32 s{S_STEP}, 0
    s_mov_b32 s{S_E1}, {WS_E1}
    s_mov_b32 s{S_E2A}, {WS_E2}
    s_mov_b32 s{S_E2B}, {WS_E2 + E2SLOT}
    s_mov_b32 s{S_E2C}, {WS_E2 + 2*E2SLOT}
    s_lshl_b32 s{S_KV}, s{S_H}, 13
    s_mov_b32 s{S_MP}, 0x{WS_MALL:x}
    """)
    if w == 3:
        if cfg.get("kvflags"): cfg["kvflags"](a, 1)
        for ah in range(2):
            for base in (WS_KX, WS_VX):
                a(f"s_add_u32 s{S_T0}, s{S_KV}, 0x{base + ah*32*8192:x}")
                a(f"buffer_load_dword v{V_X14}, v{V_X13}, s[{S_WS}:{S_WS+3}], s{S_T0} offen sc1")
        a("s_waitcnt vmcnt(0)")
    L = a.uid("L_sb")
    a(f"s_mov_b32 s{S_SPIN}, 0\nv_mov_b32 v30, 0")
    a.label(L)
    a(f"""
    buffer_load_dwordx2 v[28:29], v30, s[{S_DBG}:{S_DBG+3}], 0 offen sc1
    s_add_u32 s{S_SPIN}, s{S_SPIN}, 1
    s_cmp_gt_u32 s{S_SPIN}, {cfg['spin']}
    s_cbranch_scc1 L_fail
    s_waitcnt vmcnt(0)
    v_sad_u8 v31, v28, 0, 0
    v_sad_u8 v31, v29, 0, v31
    v_or_b32 v32, v28, v29
    v_readfirstlane_b32 s{S_T0}, v31
    v_readfirstlane_b32 s{S_T1}, v32
    s_cmp_lt_u32 s{S_T0}, 32
    s_cbranch_scc1 {L}
    s_and_b32 s{S_MODE}, s{S_T1}, 0x20202020
    s_barrier
    """)

def kv_dma(a, ahead, base, l):
    for hh in range(2):
        a(f"s_mov_b32 m0, 0x{l + hh*4096:x}")
        a(f"s_add_u32 s{S_T0}, s{S_KV}, 0x{base + ahead*32*8192 + hh*4096:x}")
        for j in range(4):
            a(f"buffer_load_dwordx4 v{V_L16}, s[{S_WS}:{S_WS+3}], s{S_T0} offen offset:{j*1024} sc1 lds")

def chain_loop(a, w, fast, cfg):
    REG, LDSF, _, _ = frag_maps(w)
    ko = korder(w); nown = len(OWN[w])
    SC = "" if fast else " sc1"
    tag = f"{'f' if fast else 's'}{w}"
    ds = Cnt(a, "lgkmcnt", 15)
    stamps = cfg.get("stamps")
    marks = []
    def stamp(i):
        if stamps and i in stamps:
            a(f"s_memtime s[{16+2*len(marks)}:{17+2*len(marks)}]")
            marks.append(i)
    def stamp_acc():
        if not stamps: return
        a("s_waitcnt lgkmcnt(0)")
        for k in range(len(marks)):
            prev = S_ST + 2 if k == 0 else 16 + 2 * (k - 1)
            a(f"s_sub_u32 s{S_ST+3}, s{16+2*k}, s{prev}\ns_add_u32 s{S_ST+4+k}, s{S_ST+4+k}, s{S_ST+3}")
        a(f"s_mov_b32 s{S_ST+2}, s{16+2*(len(marks)-1)}")
    def ldsfrag(f, dst, tg):
        for hf in range(2):
            a(f"ds_read_b128 {vr(dst+4*hf,4)}, v{V_AW} offset:{LDSF[f]*2048 + hf*1024}")
            ds.issue(tg)
    def rdA(kap, dst, base=L_M, tg=None):
        a(f"ds_read_b64_tr_b16 {vr(dst,2)}, v{V_MT0} offset:{base + kap*1024}"); ds.issue(tg)
        a(f"ds_read_b64_tr_b16 {vr(dst+2,2)}, v{V_MT1} offset:{base + kap*1024}"); ds.issue(tg)
    def zlist(r, n): return [f"v_mov_b64 {vr(r+i,2)}, 0" for i in range(0, n, 2)]
    def zero(r, n):
        for s in zlist(r, n): a(s)
    def smf(acc, A, B):
        a(f"v_smfmac_f32_16x16x64_bf16 {vr(acc,4)}, {vr(A,4)}, {vr(B,8)}, v{V_IDX}")
    def fold(t, dst):
        return [f"v_add_f32 v{t}, v{t}, v{t+2}", f"v_add_f32 v{t+1}, v{t+1}, v{t+3}", f"v_cvt_pk_bf16_f32 v{dst}, v{t}, v{t+1}"]
    def delay(n):
        while n > 0:
            t = min(n, 16); a(f"s_nop {t-1}"); n -= t
    def spin():
        a(f"s_add_u32 s{S_SPIN}, s{S_SPIN}, 1\ns_cmp_gt_u32 s{S_SPIN}, {cfg['spin']}\ns_cbranch_scc1 L_fail")
    ACC = {("q", 0): 16, ("q", 1): 20, ("k", 0): 24, ("k", 1): 28}
    LAND = 32; RING = 48
    att = w in (0, 1, 3)
    WSR = f"s[{S_WS}:{S_WS+3}]"
    if stamps:
        a(f"s_memtime s[{S_ST}:{S_ST+1}]\ns_waitcnt lgkmcnt(0)\ns_mov_b32 s{S_ST+2}, s{S_ST}")
        for i in range(12): a(f"s_mov_b32 s{S_ST+4+i}, 0")
    zero(16, 16)
    a.flush()
    a(f"s_branch L_gd_{tag}")
    a.label(f"L_loop_{tag}")
    def touch():
        if w != 3: return
        if cfg.get("kvflags"): cfg["kvflags"](a, 2)
        a(f"s_min_u32 s{S_T1}, s{S_KV}, 0x{61*32*8192:x}")
        a(f"v_lshlrev_b32 v{V_X13}, 3, v{V_L16}")
        for base in (WS_KX, WS_VX):
            a(f"s_add_u32 s{S_T2}, s{S_T1}, 0x{base + 2*32*8192:x}")
            a(f"buffer_load_dword v{V_X14}, v{V_X13}, {WSR}, s{S_T2} offen sc1")
    def kvread():
        a(f"v_and_b32 v12, 0x200, v{V_L16}\nv_mul_u32_u24 v12, 3, v12\nv_add_u32 v12, v12, v{V_L16}")
        a(f"ds_read_b128 v[12:15], v12 offset:{L_Q + w*512}"); ds.issue("mp")
    def kvstore(rel):
        a(f"s_lshr_b32 s{S_T1}, s{S_KV}, 1\ns_add_u32 s{S_T1}, s{S_T1}, 0x{WS_KVM + rel*32*4096 + w*1024:x}")
        a(f"buffer_store_dwordx4 v[12:15], v{V_L16}, {WSR}, s{S_T1} offen sc1")
    nch = nown; ch0 = OWN[w][0]
    def gload(R):
        for j in range(nch):
            a(f"buffer_load_dwordx4 {vr(R+4*j,4)}, v{V_L16}, {WSR}, s{S_T0} offen offset:{j*1024} sc1")
    def gcheck(R, Lbad):
        for j in range(nch):
            a(f"ds_write_b128 v{V_L16}, {vr(R+4*j,4)} offset:{L_M + (ch0+j)*1024}")
        a(f"v_max3_u32 v60, v{R}, v{R+1}, v{R+2}\nv_max3_u32 v61, v{R+3}, v{R+4}, v{R+5}\nv_max3_u32 v60, v{R+6}, v{R+7}, v60")
        if nch == 3:
            a(f"v_max3_u32 v61, v{R+8}, v{R+9}, v61\nv_max3_u32 v60, v{R+10}, v{R+11}, v60")
        a(f"v_max_u32 v60, v60, v61\nv_cmp_le_u32 vcc, s{S_SENT}, v60\ns_cbranch_vccnz {Lbad}")
    def mpub(R):
        for j in range(nch):
            Ls = a.uid("L_mp")
            a(f"s_cmp_lg_u32 s{S_H}, {ch0+j}\ns_cbranch_scc1 {Ls}")
            a(f"s_add_u32 s{S_T1}, s{S_MP}, {(ch0+j)*1024}")
            a(f"buffer_store_dwordx4 {vr(R+4*j,4)}, v{V_L16}, {WSR}, s{S_T1} offen sc1")
            a.label(Ls)
    a(f"s_add_u32 s{S_T0}, s{S_E2A}, {ch0*1024}\ns_mov_b32 s{S_SPIN}, 0")
    delay(cfg.get("gd1", 0))
    stamp('g0')
    gload(48)
    zero(16, 16)
    if cfg.get("g2", True):
        delay(cfg.get("gd2", 32))
        gload(32)
        a(f"s_waitcnt vmcnt({nch})")
    else:
        a("s_waitcnt vmcnt(0)")
    stamp('g1')
    gcheck(48, f"L_g2_{tag}")
    a.label(f"L_gd_{tag}")
    ds.q = []
    for j in range(nown): rdA(ko[j], RING + 4 * j, tg=("A", j))
    a(f"s_waitcnt lgkmcnt({2*nown})")
    stamp(0)
    a("s_barrier")
    stamp(1)
    for j in range(nown, 4): rdA(ko[j], RING + 4 * j, tg=("A", j))
    order = [(m, j) for j in range(6) for m in "qk"] + [("q", 6), ("q", 7), ("q", 8), ("k", 6), ("k", 7), ("k", 8)]
    ldsq = [(m, j) for (m, j) in order if (m, 0, ko[j]) in LDSF]
    pend = []
    def drain(n):
        for _ in range(n):
            if pend:
                s = pend.pop(0)
                if callable(s): s()
                else: a(s)
    for n, (m, j) in enumerate(order):
        kap = ko[j]
        A = RING + 4 * (j % 4)
        if m == "q": ds.wait(("A", j))
        stamp(f'qk{n}')
        if (m, 0, kap) in LDSF:
            ds.wait("L")
            smf(ACC[(m, 0)], A, LAND); drain(1); smf(ACC[(m, 1)], A, LAND + 8)
            i = ldsq.index((m, j))
            if i + 1 < len(ldsq):
                m2, j2 = ldsq[i + 1]
                ldsfrag((m2, 0, ko[j2]), LAND, "L"); ldsfrag((m2, 1, ko[j2]), LAND + 8, "L")
            else:
                pend += zlist(32, 8)
        else:
            smf(ACC[(m, 0)], A, REG[(m, 0, kap)]); drain(1); smf(ACC[(m, 1)], A, REG[(m, 1, kap)])
        drain(1)
        if m == "k" and j + 4 < 9:
            rdA(ko[j + 4], A, tg=("A", j + 4))
        if n == 1:
            a("s_waitcnt vmcnt(0)")
            m2, j2 = ldsq[0]
            ldsfrag((m2, 0, ko[j2]), LAND, "L"); ldsfrag((m2, 1, ko[j2]), LAND + 8, "L")
            dbase, dl = (WS_KX, L_KX) if w < 2 else (WS_VX, L_VX)
            a(f"s_mov_b32 m0, 0x{dl + (w&1)*4096:x}")
            a(f"s_add_u32 s{S_T0}, s{S_KV}, 0x{dbase + (w&1)*4096:x}")
        if 1 <= n <= 4:
            a(f"buffer_load_dwordx4 v{V_L16}, {WSR}, s{S_T0} offen offset:{(n-1)*1024} sc1 lds")
        if n == 2:
            if w == 1 and cfg.get("progress"): cfg["progress"](a, -1)
            kvread()
        if n == 6:
            ds.wait("mp")
            kvstore(-1)
            touch()
        if (m, j) == ("k", 6):
            def qw():
                a(f"ds_write_b64 v{V_QW}, v[16:17] offset:{L_Q + w*512}"); ds.issue("qw")
            pend = fold(16, 16) + fold(20, 17) + [qw] + pend
    stamp(2)
    VA = (32, 36)
    vorder = [5, 6, 7, 8, 0, 1, 2, 3, 4]
    Areg = {5: 52, 6: 56, 7: 60, 8: 48}
    reread = {0: 56, 1: 60, 2: 48, 3: 56, 4: 60}
    prev_user = {0: 6, 1: 7, 2: 8, 3: 0, 4: 1}
    vitems = [(j, t) for j in vorder for t in range(2)]
    vstate = {"i": 0}
    VL = {(3, 0): 16, (3, 1): 24, (4, 0): 40, (4, 1): 16}
    def vstep(n=1, lim=18):
        for _ in range(n):
            if vstate["i"] >= lim: return
            j, t = vitems[vstate["i"]]; vstate["i"] += 1
            A = Areg[j] if j in Areg else reread[j]
            if j not in Areg and t == 0: ds.wait(("AV", j))
            if ("v", t, ko[j]) in LDSF:
                ds.wait(("VL", j, t)); B = VL[(j, t)]
            else:
                B = REG[("v", t, ko[j])]
            smf(VA[t], A, B)
            if (j, t) == (3, 0): ldsfrag(("v", 1, ko[4]), VL[(4, 1)], ("VL", 4, 1))
            if t == 1:
                for j2, pu in prev_user.items():
                    if pu == j: rdA(ko[j2], reread[j2], tg=("AV", j2))
    def vlds():
        for (j, t) in ((3, 0), (3, 1), (4, 0)): ldsfrag(("v", t, ko[j]), VL[(j, t)], ("VL", j, t))
    drain(100)
    vstep(2)
    stamp('p0')
    for s in fold(24, 24) + fold(28, 25): a(s)
    stamp('p1')
    a(f"ds_write_b32 v{V_PW}, v24 offset:{L_K + w*512}"); ds.issue("qw")
    a(f"ds_write_b32 v{V_PW}, v25 offset:{L_K + w*512 + 256}"); ds.issue("qw")
    a("s_waitcnt vmcnt(3)" if w == 3 else "s_waitcnt vmcnt(1)")
    if w in (0, 1):
        for j in range(4):
            a(f"ds_read_b128 {vr(16+4*j,4)}, v{V_L16} offset:{L_KX + w*4096 + j*1024}"); ds.issue("kx")
    if att: zero(52, 4)
    vstep(cfg.get('vs1', 4))
    ds.wait("qw")
    stamp(3)
    a("s_barrier")
    stamp(4)
    a(f"s_cmp_eq_u32 s{S_STEP}, 63\ns_cbranch_scc1 L_tail_{tag}")
    vsnap = vstate["i"]
    if att:
        rdA(0, 40, base=L_Q, tg="q"); rdA(1, 44, base=L_Q, tg="q")
        if w == 3:
            for kap in range(2):
                for p in range(4):
                    a(f"ds_read_b64_tr_b16 {vr(16+8*kap+2*p,2)}, v{V_KT} offset:{L_K + kap*1024 + (p>>1)*512 + (p&1)*32}"); ds.issue("kx")
        vstep(cfg.get('vs2', 4))
        stamp('a0')
        ds.wait("kx"); ds.wait("q")
        stamp('a1')
        smf(52, 40, 16); smf(52, 44, 24)
        vlds()
        vstep(2)
        stamp('a2')
        a(f"""
        v_add_f32 v52, v52, v54
        v_add_f32 v53, v53, v55
        v_mul_f32 v52, s{S_C}, v52
        v_mul_f32 v53, s{S_C}, v53
        v_exp_f32 v54, v52
        v_exp_f32 v55, v53
        v_cvt_pk_bf16_f32 v54, v54, v55
        """)
        stamp('a3')
        poff = L_P + {0: 0, 1: 256, 3: 512}[w]
        a(f"ds_write_b32 v{V_PW}, v54 offset:{poff}"); ds.issue("pw")
        vstep(cfg.get('vs3', 4))
        ds.wait("pw")
    else:
        vlds()
        a(f"s_mul_i32 s{S_T2}, s{S_H}, 288")
        for i in range(4): a(f"v_mov_b32 v{12+i}, s{S_SENT}")
        a(f"s_xor_b32 s{S_T1}, s{S_E1}, {E1SLOT}\ns_mul_i32 s{S_T4}, s{S_H}, 9216\ns_add_u32 s{S_T1}, s{S_T1}, s{S_T4}")
        for j in range(9):
            if j % 4 == 0 and j: a(f"s_add_u32 s{S_T1}, s{S_T1}, 4096")
            a(f"buffer_store_dwordx4 v[12:15], v{V_L16}, {WSR}, s{S_T1} offen offset:{(j%4)*1024}{SC}")
            vstep(1)
        a(f"""s_add_u32 s{S_T1}, s{S_E2C}, s{S_T2}
        s_mov_b64 exec, s[{S_CLRM}:{S_CLRM+1}]
        buffer_store_dwordx4 v[12:15], v{V_L16}, {WSR}, s{S_T1} offen{SC}
        s_mov_b64 exec, -1""")
        vstep(3)
    stamp(5)
    a("s_barrier")
    stamp(6)
    vstep(18, lim=16)
    a.label(f"L_pv_{tag}")
    a(f"ds_read_b64_tr_b16 v[48:49], v{V_PX} offset:{L_P}"); ds.issue("p")
    a(f"ds_read_b64_tr_b16 v[50:51], v{V_PX} offset:{L_P+256}"); ds.issue("p")
    a(f"ds_read_b128 v[56:59], v{V_L16} offset:{L_VX + (2*w)*1024}"); ds.issue("p")
    a(f"ds_read_b128 v[24:27], v{V_L16} offset:{L_VX + (2*w+1)*1024}"); ds.issue("p")
    a(f"ds_read_b64_tr_b16 v[28:29], v{V_PM} offset:{L_P+512}"); ds.issue("p")
    a(f"s_cmp_eq_u32 s{S_T3}, 0x5105\ns_cbranch_scc1 L_pv2_{tag}")
    vstep(18)
    a(f"""
    v_mov_b32 v40, 0x3f803f80
    v_mov_b32 v41, 0x3f803f80
    v_mov_b32 v42, 0x3f803f80
    v_mov_b32 v43, 0x3f803f80
    v_mov_b32 v44, 0x3f803f80
    v_mov_b32 v45, 0
    """)
    stamp('v0')
    ds.wait_all()
    stamp('v1')
    a("""
    v_mfma_f32_16x16x32_bf16 v[60:63], v[40:43], v[48:51], 0
    v_mfma_f32_16x16x32_bf16 v[16:19], v[56:59], v[48:51], 0
    """)
    for s in fold(32, 32)[:2]: a(s)
    a("v_mfma_f32_16x16x32_bf16 v[20:23], v[24:27], v[48:51], 0")
    a(fold(32, 32)[2]); a("v_mov_b32 v33, 0")
    a("v_mfma_f32_16x16x16_bf16 v[60:63], v[44:45], v[28:29], v[60:63]")
    for s in fold(36, 36)[:2]: a(s)
    a("v_mfma_f32_16x16x16_bf16 v[16:19], v[32:33], v[28:29], v[16:19]")
    a(fold(36, 36)[2]); a("v_mov_b32 v37, 0")
    a("v_mfma_f32_16x16x16_bf16 v[20:23], v[36:37], v[28:29], v[20:23]")
    a(f"ds_write_b32 v{V_PW}, v32 offset:{L_Q + w*512}"); ds.issue("vw")
    a(f"ds_write_b32 v{V_PW}, v36 offset:{L_Q + w*512 + 256}"); ds.issue("vw")
    a.label(f"L_pv4_{tag}")
    stamp('v2')
    a(f"""
    v_rcp_f32 v30, v60
    v_cmp_ngt_f32 vcc, s{S_LIMHI}, v60
    v_cmp_nlt_f32 s[{S_T0+1}:{S_T0+2}], s{S_LIMLO}, v60
    v_cndmask_b32 v16, v18, v16, s[{S_C8}:{S_C8+1}]
    v_cndmask_b32 v17, v19, v17, s[{S_C8}:{S_C8+1}]
    s_or_b64 vcc, vcc, s[{S_T0+1}:{S_T0+2}]
    v_mul_f32 v16, v16, v30
    v_mul_f32 v17, v17, v30
    s_cbranch_vccnz L_slow_{tag}
    """)
    a.label(f"L_pv3_{tag}")
    stamp('v3')
    WL = {(0, 0): 32, (0, 1): 40, (1, 0): 48, (1, 1): 56}
    a(f"""
    v_cndmask_b32 v20, v22, v20, s[{S_C8}:{S_C8+1}]
    v_cndmask_b32 v21, v23, v21, s[{S_C8}:{S_C8+1}]
    v_cvt_pk_bf16_f32 v16, v16, v17
    v_mul_f32 v20, v20, v30
    v_mul_f32 v21, v21, v30
    v_cvt_pk_bf16_f32 v20, v20, v21
    """)
    stamp('v4')
    a(f"ds_write2_b32 v{V_OW}, v16, v20 offset0:0 offset1:64"); ds.issue("ow")
    for (t, kap), r in WL.items(): ldsfrag(("o", t, kap), r, ("WL", t, kap))
    a(f"s_mov_b32 s{S_T3}, 0")
    zero(24, 8)
    ds.wait("ow")
    if w == 2: a("s_waitcnt vmcnt(0)")
    stamp(7)
    a("s_barrier")
    stamp(8)
    for kap in range(2):
        a(f"ds_read_b128 {vr(16+4*kap,4)}, v{V_L16} offset:{L_O + kap*1024}"); ds.issue(("o", kap))
    OACC = {0: 24, 1: 28, 2: 32, 3: 36, 4: 40, 5: 44, 6: 48, 7: 52, 8: 56}
    pend = []
    def pstore(i):
        q = OACC[2 * i]
        return [f"s_add_u32 s{S_T0}, s{S_E1}, {(w + 4*i)*16384}",
                f"buffer_store_dwordx2 {vr(q,2)}, v{V_E1A}, {WSR}, s{S_T0} offen{SC}"]
    def drainv(n):
        while pend and n > 0:
            s = pend.pop(0); a(s)
            if s.startswith("v_"): n -= 1
        while pend and not pend[0].startswith("v_"): a(pend.pop(0))
    for t in range(9):
        for kap in range(2):
            if t == 0: ds.wait(("o", kap))
            if t < 2:
                ds.wait(("WL", t, kap)); B = WL[(t, kap)]
            else:
                B = REG[("o", t, kap)]
            stamp(f'w{t}{kap}')
            smf(OACC[t], 16 + 4 * kap, B)
            drainv(cfg.get("wodrain", 2) + (1 if (kap and t > 1) else 0))
        if t == 0: pend += zlist(32, 8)
        if t >= 1 and t - 1 < 8:
            tt = t - 1
            pend += fold(OACC[tt], OACC[tt & ~1] + (tt & 1))
            if tt & 1: pend += pstore(tt >> 1)
            if t + 3 <= 8: pend += zlist(OACC[t + 3], 4)
    drainv(100)
    for s in fold(56, 56): a(s)
    a(f"s_add_u32 s{S_T0}, s{S_E1}, {(16 + (w>>1))*16384}")
    a(f"buffer_store_dword v56, v{V_E1A}, {WSR}, s{S_T0} offen offset:{(w&1)*4}{SC}")
    stamp(9)
    if w != 3:
        if w == 2:
            a(f"s_cmp_ge_u32 s{S_H}, 8\ns_cbranch_scc1 L_rd_{tag}")
        def rload(R):
            for i in range(4):
                a(f"buffer_load_dwordx4 {vr(R+4*i,4)}, v{V_L16}, {WSR}, s{S_T0} offen offset:{i*1024} sc1")
        def rred(R, extra, Lbad):
            for i in range(4):
                a(f"s_waitcnt vmcnt({3-i+extra})")
                a(f"v_mfma_f32_16x16x32_bf16 v[24:27], v[20:23], {vr(R+4*i,4)}, {'0' if i == 0 else 'v[24:27]'}")
            a(f"""
            v_add_f32_dpp v28, v24, v24 row_ror:8 row_mask:0xf bank_mask:0xf
            v_add_f32_dpp v29, v25, v25 row_ror:8 row_mask:0xf bank_mask:0xf
            v_cmp_u_f32 vcc, v28, v28
            v_add_f32_dpp v30, v26, v26 row_ror:8 row_mask:0xf bank_mask:0xf
            v_add_f32_dpp v31, v27, v27 row_ror:8 row_mask:0xf bank_mask:0xf
            v_cvt_pk_bf16_f32 v28, v28, v29
            v_cvt_pk_bf16_f32 v29, v30, v31
            s_cbranch_vccnz {Lbad}
            """)
        a(f"s_add_u32 s{S_T0}, s{S_E1}, s{S_UNIT}\ns_mov_b32 s{S_SPIN}, 0")
        if w in cfg.get("rwait", ()): a("s_waitcnt vmcnt(0)")
        delay(cfg.get("rd1", (0, 0, 0))[w])
        stamp('r0')
        rload(32)
        a(f"""
        v_mov_b32 v16, 0x3f80
        v_mov_b32 v17, 0x3f800000
        v_cndmask_b32 v16, v16, v17, s[{S_ODD}:{S_ODD+1}]
        """)
        for j in range(4):
            a(f"v_cndmask_b32 v{20+j}, 0, v16, s[{S_SEL+2*j}:{S_SEL+2*j+1}]")
        a(f"s_add_u32 s{S_T4}, s{S_MP}, {MSTR}")
        if cfg.get("r2", True):
            delay(cfg.get("rd2", 32))
            rload(48)
            rred(32, 4, f"L_r2_{tag}")
        else:
            rred(32, 0, f"L_r2_{tag}")
        a.label(f"L_rp_{tag}")
        stamp('r1')
        a(f"""
        s_mov_b64 exec, s[{S_PUBM}:{S_PUBM+1}]
        buffer_store_dwordx2 v[28:29], v{V_PUB}, {WSR}, s{S_E2B} offen{SC}
        s_mov_b64 exec, -1
        """)
        if cfg.get("gwait"): a("s_waitcnt vmcnt(0)")
        a.label(f"L_rd_{tag}")
    stamp(10)
    a(f"""
    s_xor_b32 s{S_E1}, s{S_E1}, {E1SLOT}
    s_mov_b32 s{S_T0}, s{S_E2A}
    s_mov_b32 s{S_E2A}, s{S_E2B}
    s_mov_b32 s{S_E2B}, s{S_E2C}
    s_mov_b32 s{S_E2C}, s{S_T0}
    s_add_u32 s{S_STEP}, s{S_STEP}, 1
    s_add_u32 s{S_KV}, s{S_KV}, {0 if cfg.get("samekv") else 32*8192}
    s_add_u32 s{S_MP}, s{S_MP}, {MSTR}
    """)
    stamp_acc()
    a("s_barrier")
    a.flush()
    a(f"s_branch L_loop_{tag}")
    a.label(f"L_g2_{tag}")
    if not cfg.get("g2", True):
        gload(32)
    a.label(f"L_g3_{tag}")
    a("s_waitcnt vmcnt(0)")
    gcheck(32, f"L_g4_{tag}")
    a.label(f"L_g5_{tag}")
    a.flush()
    a(f"s_branch L_gd_{tag}")
    a.label(f"L_g4_{tag}")
    a(f"v_cmp_eq_u32 vcc, s{S_SENT}, v32")
    for i in range(1, 4 * nch):
        a(f"v_cmp_eq_u32 s[{S_T0+1}:{S_T0+2}], s{S_SENT}, v{32+i}\ns_or_b64 vcc, vcc, s[{S_T0+1}:{S_T0+2}]")
    a(f"s_cbranch_vccz L_g5_{tag}")
    spin()
    a("s_waitcnt lgkmcnt(0)")
    gload(32)
    a(f"s_branch L_g3_{tag}")
    if w != 3:
        a.label(f"L_r2_{tag}")
        a.flush()
        if not cfg.get("r2", True): rload(48)
        a.label(f"L_r3_{tag}")
        rred(48, 0, f"L_r4_{tag}")
        a(f"s_branch L_rp_{tag}")
        a.label(f"L_r4_{tag}")
        a(f"v_cmp_eq_u32 vcc, s{S_SENT}, v48")
        for i in range(1, 16):
            a(f"v_cmp_eq_u32 s[{S_T0+1}:{S_T0+2}], s{S_SENT}, v{48+i}\ns_or_b64 vcc, vcc, s[{S_T0+1}:{S_T0+2}]")
        a(f"s_cbranch_vccz L_rp_{tag}")
        spin()
        rload(48)
        a(f"s_branch L_r3_{tag}")
    a.label(f"L_slow_{tag}")
    a(f"s_cmp_eq_u32 s{S_T3}, 0x5105\ns_cbranch_scc1 L_pv3_{tag}")
    a(f"s_mov_b32 s{S_T3}, 0x5105")
    a.flush()
    if att:
        a("v_mov_b32 v54, v52\nv_mov_b32 v55, v53")
        for sh in (1, 2, 4, 8):
            a(f"v_max_f32_dpp v54, v54, v54 row_ror:{sh} row_mask:0xf bank_mask:0xf")
            a(f"v_max_f32_dpp v55, v55, v55 row_ror:{sh} row_mask:0xf bank_mask:0xf")
        a(f"v_and_b32 v31, 15, v{V_PW}\nv_lshlrev_b32 v31, 1, v31")
        j = {0: 0, 1: 1, 3: 2}[w]
        a(f"ds_write_b64 v31, v[54:55] offset:{L_MX + j*32}\ns_waitcnt lgkmcnt(0)")
    a("s_barrier")
    if att:
        a(f"""
        ds_read_b64 v[16:17], v31 offset:{L_MX}
        ds_read_b64 v[18:19], v31 offset:{L_MX+32}
        ds_read_b64 v[20:21], v31 offset:{L_MX+64}
        s_waitcnt lgkmcnt(0)
        v_max3_f32 v54, v16, v18, v20
        v_max3_f32 v55, v17, v19, v21
        v_sub_f32 v54, v52, v54
        v_sub_f32 v55, v53, v55
        v_exp_f32 v54, v54
        v_exp_f32 v55, v55
        v_cvt_pk_bf16_f32 v54, v54, v55
        ds_write_b32 v{V_PW}, v54 offset:{poff}
        s_waitcnt lgkmcnt(0)
        """)
    a("s_barrier")
    a.flush()
    a(f"s_branch L_pv_{tag}")
    a.label(f"L_pv2_{tag}")
    a("""
    s_waitcnt lgkmcnt(0)
    v_mfma_f32_16x16x32_bf16 v[60:63], v[40:43], v[48:51], 0
    v_mfma_f32_16x16x32_bf16 v[16:19], v[56:59], v[48:51], 0
    v_mfma_f32_16x16x32_bf16 v[20:23], v[24:27], v[48:51], 0
    v_mfma_f32_16x16x16_bf16 v[60:63], v[44:45], v[28:29], v[60:63]
    v_mfma_f32_16x16x16_bf16 v[16:19], v[32:33], v[28:29], v[16:19]
    v_mfma_f32_16x16x16_bf16 v[20:23], v[36:37], v[28:29], v[20:23]
    """)
    a.flush()
    a(f"s_branch L_pv4_{tag}")
    a.label(f"L_tail_{tag}")
    a("s_waitcnt lgkmcnt(0)"); ds.q = []
    a.flush()
    vstate["i"] = vsnap
    vlds()
    vstep(18)
    for s in fold(32, 32) + fold(36, 36): a(s)
    a(f"ds_write_b32 v{V_PW}, v32 offset:{L_Q + w*512}")
    a(f"ds_write_b32 v{V_PW}, v36 offset:{L_Q + w*512 + 256}")
    a("s_waitcnt vmcnt(0)")
    kvread()
    a("s_waitcnt lgkmcnt(0)"); ds.q = []
    kvstore(0)
    a("s_waitcnt vmcnt(0)\ns_barrier")
    if w == 1 and cfg.get("progress"): cfg["progress"](a, 1)
    if cfg.get("progress_last") and w == 0: cfg["progress_last"](a)
    if stamps:
        a(f"s_lshl_b32 s{S_T0}, s{S_H}, 2\ns_add_u32 s{S_T0}, s{S_T0}, {w}\ns_lshl_b32 s{S_T0}, s{S_T0}, 6\ns_add_u32 s{S_T0}, s{S_T0}, 0x{WS_PROF:x}")
        for i in range(12): a(f"v_mov_b32 v{16+i}, s{S_ST+4+i}")
        a("v_mov_b32 v28, 0\ns_mov_b64 exec, 1")
        for i in range(3):
            a(f"buffer_store_dwordx4 {vr(16+4*i,4)}, v28, {WSR}, s{S_T0} offen offset:{i*16}")
    a("s_branch L_end")

def gen_chain(a, cfg):
    chain_setup(a, cfg)
    for w in range(1, 4):
        a(f"s_cmp_eq_u32 s{S_W}, {w}\ns_cbranch_scc1 L_cw{w}")
    for w in range(4):
        a.flush()
        a.label(f"L_cw{w}")
        chain_prologue(a, w, cfg)
        a(f"s_mov_b32 s{S_T3}, 0")
        if cfg.get("prof_pro"): cfg["prof_pro"](a, w)
        a(f"s_cmp_eq_u32 s{S_MODE}, 0\ns_cbranch_scc1 L_slowmode_{w}")
        chain_loop(a, w, True, cfg)
        a.label(f"L_slowmode_{w}")
        chain_loop(a, w, False, cfg)
```

```python
KN = "concat_heads__softmax_full_mha__memory_aug_recurrent_mem_tr__prompt_kernel"
WS_E1   = 0x0000000; E1SLOT = 72 * 4096
WS_E2   = 0x0100000; E2SLOT = 0x4000
WS_FLAG = 0x0180000
WS_PROF = 0x0200000
WS_MALL = 0x0300000
MSTR = 9216
WS_KX   = 0x1000000
WS_VX   = 0x2000000
WS_QX   = 0x3000000
WS_KVM  = 0x4100000
WS_OB   = 0x5000000
WS_AQ   = 0x6000000
WS_AKV  = 0x6800000
WS_OA   = 0x7000000
WS_SIZE = 0x10000000
SENT = 0xFFBFFFBF
L_M = 0x0000; L_Q = 0x2400; L_K = 0x2C00; L_O = 0x3400; L_P = 0x3C00; L_MX = 0x3F40
L_KX = 0x4000; L_VX = 0x6000; L_W = 0x8000

F_KV   = 0
F_PROG = 4096
F_SEG  = 8192
F_Q    = 16384
F_A1   = 16384 + 128
F_A2   = 16384 + 1024
F_SIZE = 20480
```

```python
from asmlib import *
from layout import *
from chain import Cnt

B_WS, B_DBG, B_OUT = 8, 12, 16
B_W, B_X = 20, 24
B_WAVE = 28
B_WOFF = 29
B_RB = 30
B_RBSTEP = 31
B_RBEND = 32
B_T0, B_T1, B_T2, B_T3 = 33, 34, 35, 36
B_BUF = 37
B_ID = 38
B_SPIN = 39
B_P0, B_P1, B_P2, B_P3 = 40, 41, 42, 43
B_PTR = 64
XBUF = 36864
STG = 2 * XBUF
STGW = 20480

PANEL0 = 224
def preg(NT, t, ks): return PANEL0 + (ks * NT + t) * 4

def lane_fields(a):
    a("""
    v_and_b32 v1, 63, v0
    v_lshrrev_b32 v2, 4, v1
    v_and_b32 v3, 15, v1
    """)

def pg_load_panel(a, NT, wstride, xissue=None, nks=18, pr=None, toff=None, perm=False, stg=STG, stgw=STGW):
    vm = Cnt(a, "vmcnt", 63)
    pr = pr or (lambda t, ks: preg(NT, t, ks))
    a("v_lshrrev_b32 v4, 3, v1\nv_and_b32 v5, 7, v1")
    if perm:
        a("v_and_b32 v6, 6, v4\nv_xor_b32 v5, v5, v6\nv_mov_b32 v6, v5")
    else:
        a("v_and_b32 v6, 2, v4\nv_xor_b32 v5, v5, v6\nv_xor_b32 v6, 4, v5")
    if NT == 3:
        a("v_min_u32 v5, 5, v5\nv_min_u32 v6, 5, v6")
    a(f"v_mul_u32_u24 v4, {wstride}, v4")
    if toff is None:
        a("v_lshl_add_u32 v5, v5, 4, v4\nv_lshl_add_u32 v6, v6, 4, v4")
    else:
        assert toff == (0, 4, 36, 40)
        for r in (5, 6):
            a(f"""v_and_b32 v7, 1, v{r}
            v_lshl_add_u32 v7, v7, 4, v4
            v_bfe_u32 v8, v{r}, 1, 1
            v_lshl_add_u32 v7, v8, 2, v7
            v_lshrrev_b32 v8, 2, v{r}
            v_mul_u32_u24 v8, 36, v8
            v_add_u32 v{r}, v7, v8""")
    a("v_lshrrev_b32 v7, 2, v3\nv_and_b32 v8, 3, v3")
    if perm:
        a("v_lshlrev_b32 v9, 9, v2")
    else:
        a("v_lshlrev_b32 v9, 10, v2")
    a(f"""
    v_lshl_add_u32 v9, v7, 7, v9
    v_lshl_add_u32 v9, v8, 3, v9
    v_lshrrev_b32 v7, 1, v7
    v_and_b32 v8, 1, v2
    v_lshl_add_u32 v7, v8, 1, v7
    v_lshlrev_b32 v7, 5, v7
    s_mul_i32 s{B_T0}, s{B_WAVE}, {stgw}
    s_add_u32 s{B_T0}, s{B_T0}, {stg}
    v_add_u32 v9, s{B_T0}, v9
    """)
    for t in range(NT):
        a(f"v_xor_b32 v{10+t}, {t*32}, v7\nv_add_u32 v{10+t}, v{10+t}, v9")
    NS = stgw // 4096
    def issue(ks):
        for j in range(4):
            a(f"s_add_u32 m0, s{B_T0}, {(ks % NS)*4096 + j*1024}")
            a(f"s_add_u32 s{B_T1}, s{B_WOFF}, {(32*ks + 8*j)*wstride}")
            a(f"buffer_load_dwordx4 v{5 + (j&1)}, s[{B_W}:{B_W+3}], s{B_T1} offen lds")
            vm.issue(("w", ks))
    for ks in range(NS): issue(ks)
    if xissue: xissue(vm)
    for ks in range(nks):
        vm.wait(("w", ks))
        for t in range(NT):
            for p in range(2):
                a(f"ds_read_b64_tr_b16 {vr(pr(t,ks)+2*p,2)}, v{10+t} offset:{(ks % NS)*4096 + p*(2048 if perm else 512)}")
        a("s_waitcnt lgkmcnt(0)")
        if ks + NS < nks: issue(ks + NS)

def pg_xaddr(a):
    a(f"""
    v_lshrrev_b32 v8, 3, v1
    v_and_b32 v9, 7, v1
    v_lshrrev_b32 v10, 1, v8
    v_xor_b32 v9, v9, v10
    v_xor_b32 v10, 4, v9
    v_mul_u32_u24 v8, 1152, v8
    v_lshl_add_u32 v4, v9, 4, v8
    v_lshl_add_u32 v5, v10, 4, v8
    v_lshrrev_b32 v8, 3, v3
    v_mul_u32_u24 v8, 9216, v8
    v_and_b32 v9, 7, v3
    v_lshl_add_u32 v8, v9, 7, v8
    v_lshrrev_b32 v9, 1, v3
    v_xor_b32 v9, v9, v2
    v_lshl_add_u32 v6, v9, 4, v8
    v_xor_b32 v7, 64, v6
    """)

def pg_xdma(a, rb_sgpr, buf_sgpr_expr, vm=None, va=(4, 5)):
    a(f"""
    s_lshl_b32 s{B_T2}, s{rb_sgpr}, 2
    s_add_u32 s{B_T2}, s{B_T2}, s{B_WAVE}
    s_mul_i32 s{B_T2}, s{B_T2}, 9216
    s_mul_i32 s{B_T3}, s{B_WAVE}, 9216
    s_add_u32 s{B_T3}, s{B_T3}, {buf_sgpr_expr}
    """)
    out = []
    for ln in range(9):
        out.append([f"s_add_u32 m0, s{B_T3}, {ln*1024 - ln*128}",
                    f"buffer_load_dwordx4 v{va[0]}, s[{B_X}:{B_X+3}], s{B_T2} offen offset:{ln*128} sc1 lds"])
    return out

def pg_run(a, NT, wstride, swap_fn, epilogue, tag, pre_store=None, post_block=None, nst=4, toff=None, xdep=None, varsel=None):
    lane_fields(a)
    a("s_barrier")
    pg_xaddr(a)
    a(f"""
    s_and_b32 s{B_T0}, s{B_WAVE}, 1
    s_cmp_eq_u32 s{B_T0}, 1
    s_cselect_b64 vcc, -1, 0
    v_cndmask_b32 v16, v4, v5, vcc
    v_mov_b32 v18, v6
    v_mov_b32 v19, v7
    s_mov_b32 s{B_BUF}, 0
    """)
    def xissue(vm):
        for pair in pg_xdma(a, B_RB, "0", va=(16, 16)):
            for s in pair: a(s)
            vm.issue("x")
    pg_load_panel(a, NT, wstride, None if xdep else xissue, toff=toff)
    if xdep:
        xdep(a)
        xissue(Cnt(a, "vmcnt", 63))
    a("v_mov_b32 v4, v16\nv_mov_b32 v6, v18\nv_mov_b32 v7, v19")
    a("s_waitcnt vmcnt(0)")
    if pre_store: pre_store(a)
    variants = sorted(set(swap_fn(w) for w in range(4)))
    if varsel:
        variants = [False, True]
        varsel(a)
        a(f"s_cbranch_scc1 L_pg_{tag}_1")
    elif len(variants) == 2:
        ws = [w for w in range(4) if swap_fn(w)]
        assert ws in ([0, 1], [2, 3])
        a(f"s_cmp_{'lt' if ws == [0,1] else 'ge'}_u32 s{B_WAVE}, 2\ns_cbranch_scc1 L_pg_{tag}_1")
    for var in variants:
        vt = f"{tag}_{int(var)}"
        a.flush()
        a.label(f"L_pg_{vt}")
        XR = 32
        ACC = 64
        ds = Cnt(a, "lgkmcnt", 15)
        a.label(f"L_pgl_{vt}")
        a(f"s_waitcnt vmcnt({nst})\ns_barrier")
        if post_block: post_block(a, vt, True)
        a(f"v_add_u32 v8, s{B_BUF}, v6\nv_add_u32 v9, s{B_BUF}, v7")
        a(f"s_add_u32 s{B_T1}, s{B_RB}, s{B_RBSTEP}\ns_min_u32 s{B_T1}, s{B_T1}, 63\ns_xor_b32 s{B_BUF}, s{B_BUF}, {XBUF}")
        dmas = pg_xdma(a, B_T1, f"s{B_BUF}")
        frs = [(ks, rt) for ks in range(18) for rt in range(2)]
        def rd(i):
            ks, rt = frs[i]
            a(f"ds_read_b128 {vr(XR + 4*(i%8),4)}, v{8 + (ks&1)} offset:{rt*18432 + (ks>>1)*1024}"); ds.issue(i)
        for i in range(7): rd(i)
        for i, (ks, rt) in enumerate(frs):
            ds.wait(i)
            for t in range(NT):
                acc = vr(ACC + (rt*NT + t)*4, 4); X = vr(XR + 4*(i%8), 4); W = vr(preg(NT, t, ks), 4)
                A, B = (W, X) if var else (X, W)
                a(f"v_mfma_f32_16x16x32_bf16 {acc}, {A}, {B}, {'0' if ks == 0 else acc}")
                if t == 0 and i + 7 < len(frs): rd(i + 7)
                if t == 1 and dmas and i % 2 == 0:
                    for s in dmas.pop(0): a(s)
        epilogue(a, var, ACC)
        a(f"s_add_u32 s{B_RB}, s{B_RB}, s{B_RBSTEP}\ns_cmp_lt_u32 s{B_RB}, s{B_RBEND}")
        a.flush()
        a(f"s_cbranch_scc1 L_pgl_{vt}")
        a("s_waitcnt vmcnt(0)\ns_barrier")
        if post_block: post_block(a, vt, False)
        if var != variants[-1]: a(f"s_branch L_pgd_{tag}")
    a.label(f"L_pgd_{tag}")

def epi_kq(a, ACC, base_sgpr, NT=4):
    a("v_lshlrev_b32 v10, 4, v1")
    for rt in range(2):
        for pr in range(NT // 2):
            t0 = ACC + (rt*NT + 2*pr)*4; t1 = t0 + 4; q = 12 + 4*((rt*2+pr) % 4)
            a(f"""v_cvt_pk_bf16_f32 v{q}, v{t0}, v{t0+1}
            v_cvt_pk_bf16_f32 v{q+1}, v{t1}, v{t1+1}
            v_cvt_pk_bf16_f32 v{q+2}, v{t0+2}, v{t0+3}
            v_cvt_pk_bf16_f32 v{q+3}, v{t1+2}, v{t1+3}""")
            if rt == 1 and pr == 0: a(f"s_add_u32 s{base_sgpr}, s{base_sgpr}, 4096")
            a(f"buffer_store_dwordx4 {vr(q,4)}, v10, s[{B_WS}:{B_WS+3}], s{base_sgpr} offen offset:{pr*1024} sc1")

def epi_v(a, ACC, base_sgpr, NT=4):
    a("v_lshlrev_b32 v10, 4, v1")
    for t in range(NT):
        t0 = ACC + t*4; t1 = ACC + (NT + t)*4; q = 12 + 4*(t % 4)
        a(f"""v_cvt_pk_bf16_f32 v{q}, v{t0}, v{t0+1}
        v_cvt_pk_bf16_f32 v{q+1}, v{t0+2}, v{t0+3}
        v_cvt_pk_bf16_f32 v{q+2}, v{t1}, v{t1+1}
        v_cvt_pk_bf16_f32 v{q+3}, v{t1+2}, v{t1+3}""")
        a(f"buffer_store_dwordx4 {vr(q,4)}, v10, s[{B_WS}:{B_WS+3}], s{base_sgpr} offen offset:{t*1024} sc1")

def srd(a, s, ptr, nbytes):
    a(f"s_mov_b32 s{s}, s{ptr}\ns_and_b32 s{s+1}, s{ptr+1}, 0xffff\ns_mov_b32 s{s+2}, 0x{nbytes:x}\ns_mov_b32 s{s+3}, 0x20000")

def bulk_setup(a):
    a(f"""
    s_load_dwordx16 s[{B_PTR}:{B_PTR+15}], s[0:1], 0
    s_load_dwordx8 s[{B_PTR+16}:{B_PTR+23}], s[0:1], 64
    s_load_dwordx2 s[{B_PTR+24}:{B_PTR+25}], s[0:1], 96
    v_lshrrev_b32 v1, 6, v0
    v_readfirstlane_b32 s{B_WAVE}, v1
    s_waitcnt lgkmcnt(0)
    """)
    srd(a, B_OUT, B_PTR + 20, 2048 * 1152 * 2)
    srd(a, B_DBG, B_PTR + 22, 256)
    srd(a, B_WS, B_PTR + 24, WS_SIZE)

def task_kv(a, h_sgpr, r_sgpr, nsplit, post_block=None, pre_store=None):
    srd(a, B_X, B_PTR + 6, 2048 * 576 * 2)
    a(f"""
    s_cmp_lt_u32 s{B_WAVE}, 2
    s_cselect_b32 s{B_T0}, s{B_PTR+12}, s{B_PTR+14}
    s_cselect_b32 s{B_T1}, s{B_PTR+13}, s{B_PTR+15}
    """)
    srd(a, B_W, B_T0, 576 * 4096 * 2)
    a(f"""
    s_and_b32 s{B_T0}, s{B_WAVE}, 1
    s_lshl_b32 s{B_T0}, s{B_T0}, 7
    s_lshl_b32 s{B_WOFF}, s{h_sgpr}, 8
    s_add_u32 s{B_WOFF}, s{B_WOFF}, s{B_T0}
    s_mov_b32 s{B_RB}, s{r_sgpr}
    s_mov_b32 s{B_RBSTEP}, {nsplit}
    s_mov_b32 s{B_RBEND}, 64
    """)
    def epi(a, var, ACC):
        a(f"""
        s_lshl_b32 s{B_T0}, s{B_RB}, 5
        s_add_u32 s{B_T0}, s{B_T0}, s{h_sgpr}
        s_lshl_b32 s{B_T0}, s{B_T0}, 13
        s_and_b32 s{B_T1}, s{B_WAVE}, 1
        """)
        if var:
            a(f"s_lshl_b32 s{B_T1}, s{B_T1}, 11\ns_add_u32 s{B_T0}, s{B_T0}, s{B_T1}\ns_add_u32 s{B_T0}, s{B_T0}, 0x{WS_KX:x}")
            epi_kq(a, ACC, B_T0)
        else:
            a(f"s_lshl_b32 s{B_T1}, s{B_T1}, 12\ns_add_u32 s{B_T0}, s{B_T0}, s{B_T1}\ns_add_u32 s{B_T0}, s{B_T0}, 0x{WS_VX:x}")
            epi_v(a, ACC, B_T0)
    pg_run(a, 4, 8192, lambda w: w < 2, epi, "kv", post_block=post_block, pre_store=pre_store)

def task_q(a, hp_sgpr, r_sgpr, nsplit, post_block=None):
    srd(a, B_X, B_PTR + 6, 2048 * 576 * 2)
    srd(a, B_W, B_PTR + 10, 576 * 4096 * 2)
    a(f"""
    s_lshl_b32 s{B_T0}, s{B_WAVE}, 7
    s_lshl_b32 s{B_WOFF}, s{hp_sgpr}, 9
    s_add_u32 s{B_WOFF}, s{B_WOFF}, s{B_T0}
    s_mov_b32 s{B_RB}, s{r_sgpr}
    s_mov_b32 s{B_RBSTEP}, {nsplit}
    s_mov_b32 s{B_RBEND}, 64
    """)
    def epi(a, var, ACC):
        a(f"""
        s_lshl_b32 s{B_T0}, s{B_RB}, 4
        s_add_u32 s{B_T0}, s{B_T0}, s{hp_sgpr}
        s_lshl_b32 s{B_T0}, s{B_T0}, 1
        s_lshr_b32 s{B_T1}, s{B_WAVE}, 1
        s_add_u32 s{B_T0}, s{B_T0}, s{B_T1}
        s_lshl_b32 s{B_T0}, s{B_T0}, 13
        s_and_b32 s{B_T1}, s{B_WAVE}, 1
        s_lshl_b32 s{B_T1}, s{B_T1}, 11
        s_add_u32 s{B_T0}, s{B_T0}, s{B_T1}
        s_add_u32 s{B_T0}, s{B_T0}, 0x{WS_QX:x}
        """)
        epi_kq(a, ACC, B_T0)
    pg_run(a, 4, 8192, lambda w: True, epi, "q", post_block=post_block)

AK_TAIL = 65536; AV_OFF = 73728; AIMG = 0x28000; AQ_TAIL = 0x200000
def task_a1(a, pn_sgpr, r_sgpr, nsplit, post_block=None):
    srd(a, B_X, B_PTR + 0, 2048 * 576 * 2)
    srd(a, B_W, B_PTR + 2, 576 * 1728 * 2)
    a(f"""
    s_lshl_b32 s{B_T0}, s{pn_sgpr}, 2
    s_add_u32 s{B_T0}, s{B_T0}, s{B_WAVE}
    s_mul_i32 s{B_WOFF}, s{B_T0}, 72
    s_mov_b32 s{B_RB}, s{r_sgpr}
    s_mov_b32 s{B_RBSTEP}, {nsplit}
    s_mov_b32 s{B_RBEND}, 64
    s_and_b32 s{B_P2}, s{B_T0}, 15
    s_lshl_b32 s{B_P2}, s{B_P2}, 1
    """)
    WSR = f"s[{B_WS}:{B_WS+3}]"
    def epi(a, var, ACC):
        if var:
            a(f"""
            v_lshrrev_b32 v10, 1, v2
            v_lshlrev_b32 v10, 9, v10
            v_lshl_add_u32 v10, v3, 4, v10
            v_and_b32 v11, 1, v2
            v_lshl_add_u32 v10, v11, 3, v10
            v_lshlrev_b32 v11, 2, v3
            s_mov_b32 s{B_T0}, 0x{AIMG:x}
            s_mov_b32 s{B_T1}, 0x{WS_AKV:x}
            s_mov_b32 s{B_T2}, 0x{AIMG:x}
            s_mov_b32 s{B_T3}, 0x{WS_AKV + AK_TAIL:x}
            s_cmp_lt_u32 s{pn_sgpr}, 4
            s_cmov_b32 s{B_T0}, 0x10000
            s_cmov_b32 s{B_T1}, 0x{WS_AQ:x}
            s_cmov_b32 s{B_T2}, 0x2000
            s_cmov_b32 s{B_T3}, 0x{WS_AQ + AQ_TAIL:x}
            s_mul_i32 s44, s{B_P2}, s{B_T0}
            s_add_u32 s44, s44, s{B_T1}
            s_lshl_b32 s46, s{B_RB}, 10
            s_add_u32 s44, s44, s46
            s_mul_i32 s45, s{B_P2}, s{B_T2}
            s_add_u32 s45, s45, s{B_T3}
            s_lshl_b32 s46, s{B_RB}, 7
            s_add_u32 s45, s45, s46
            s_mov_b32 s46, 0
            s_mov_b32 s47, 0xffff0000
            """)
            for hh in range(2):
                for rt in range(2):
                    tA = ACC + (rt*4 + 2*hh)*4; tB = tA + 4; q = 12 + 4*((hh*2+rt) % 4)
                    a(f"""v_cvt_pk_bf16_f32 v{q}, v{tA}, v{tA+1}
                    v_cvt_pk_bf16_f32 v{q+1}, v{tA+2}, v{tA+3}
                    v_cvt_pk_bf16_f32 v{q+2}, v{tB+2}, v{tB+3}
                    buffer_store_dwordx2 {vr(q,2)}, v10, {WSR}, s44 offen offset:{rt*256} sc1
                    s_mov_b64 exec, s[46:47]
                    buffer_store_dword v{q+2}, v11, {WSR}, s45 offen offset:{rt*64} sc1
                    s_mov_b64 exec, -1""")
                if hh == 0: a(f"s_add_u32 s44, s44, s{B_T0}\ns_add_u32 s45, s45, s{B_T2}")
        else:
            a(f"""
            v_and_b32 v10, 1, v2
            v_mul_u32_u24 v10, 304, v10
            v_lshl_add_u32 v10, v3, 4, v10
            v_lshrrev_b32 v11, 1, v2
            v_lshl_add_u32 v10, v11, 3, v10
            s_mul_i32 s44, s{B_P2}, 0x{AIMG:x}
            s_mul_i32 s46, s{B_RB}, 1216
            s_add_u32 s44, s44, s46
            s_add_u32 s44, s44, 0x{WS_AKV + AV_OFF:x}
            s_mov_b32 s46, 0xc000c000
            s_mov_b32 s47, 0xc000c000
            """)
            for hh in range(2):
                for rt in range(2):
                    tA = ACC + (rt*4 + 2*hh)*4; tB = tA + 4; q = 12 + 4*((hh*2+rt) % 4)
                    a(f"""v_cvt_pk_bf16_f32 v{q}, v{tA}, v{tA+1}
                    v_cvt_pk_bf16_f32 v{q+1}, v{tA+2}, v{tA+3}
                    v_cvt_pk_bf16_f32 v{q+2}, v{tB}, v{tB+1}
                    v_cvt_pk_bf16_f32 v{q+3}, v{tB+2}, v{tB+3}
                    buffer_store_dwordx2 {vr(q,2)}, v10, {WSR}, s44 offen offset:{rt*608} sc1
                    s_mov_b64 exec, s[46:47]
                    buffer_store_dwordx2 {vr(q+2,2)}, v10, {WSR}, s44 offen offset:{rt*608 + 32} sc1
                    s_mov_b64 exec, -1""")
                if hh == 0: a(f"s_add_u32 s44, s44, 0x{AIMG:x}")
    pg_run(a, 4, 3456, lambda w: True, epi, "a1", post_block=post_block, nst=8, toff=(0, 4, 36, 40),
           varsel=lambda a: a(f"s_cmp_lt_u32 s{pn_sgpr}, 8"))

def task_a3(a, pn_sgpr, r_sgpr, nsplit, xdep=None):
    a(f"s_add_u32 s{B_T0}, s{B_PTR+24}, 0x{WS_OA:x}\ns_addc_u32 s{B_T1}, s{B_PTR+25}, 0")
    srd(a, B_X, B_T0, 2048 * 576 * 2)
    srd(a, B_W, B_PTR + 4, 576 * 576 * 2)
    a(f"""
    s_lshl_b32 s{B_T0}, s{pn_sgpr}, 2
    s_add_u32 s{B_T0}, s{B_T0}, s{B_WAVE}
    s_mul_i32 s{B_WOFF}, s{B_T0}, 96
    s_mov_b32 s{B_RB}, s{r_sgpr}
    s_mov_b32 s{B_RBSTEP}, {nsplit}
    s_mov_b32 s{B_RBEND}, 64
    """)
    def epi(a, var, ACC):
        a(f"""
        v_mul_u32_u24 v10, 2304, v3
        v_lshl_add_u32 v10, v2, 3, v10
        s_mul_i32 s44, s{B_RB}, {32*2304}
        s_add_u32 s44, s44, s{B_WOFF}
        """)
        for rt in range(2):
            for t in range(3):
                t0 = ACC + (rt*3 + t)*4; q = 12 + 2*((rt*3+t) % 6)
                a(f"""v_cvt_pk_bf16_f32 v{q}, v{t0}, v{t0+1}
                v_cvt_pk_bf16_f32 v{q+1}, v{t0+2}, v{t0+3}
                buffer_store_dwordx2 {vr(q,2)}, v10, s[{B_OUT}:{B_OUT+3}], s44 offen offset:{t*32}""")
            if rt == 0: a(f"s_add_u32 s44, s44, {16*2304}")
    pg_run(a, 3, 1152, lambda w: True, epi, "a3", nst=6, xdep=xdep)
```

```python
import sys
from asmlib import *
from layout import *
import chain
from pgemm import *
from attna import *
from b23 import *

SPIN = 4000000
B_CNT = 58

def poll(a, srd, off, thr, vt=(28, 29), st=(B_T0, B_SPIN), sleep=2, cmp="ge"):
    L = a.uid("L_poll")
    a(f"s_mov_b32 s{st[1]}, 0\nv_mov_b32 v{vt[0]}, {off}")
    a.label(L)
    a(f"""
    buffer_load_dword v{vt[1]}, v{vt[0]}, s[{srd}:{srd+3}], 0 offen sc1
    s_add_u32 s{st[1]}, s{st[1]}, 1
    s_cmp_gt_u32 s{st[1]}, {SPIN}
    s_cbranch_scc1 L_fail
    s_waitcnt vmcnt(0)
    v_readfirstlane_b32 s{st[0]}, v{vt[1]}
    s_cmp_ge_u32 s{st[0]}, {thr}
    s_cbranch_scc1 {L}_d
    s_sleep {sleep}
    s_branch {L}
    """)
    a.label(L + "_d")

def signal_add(a, off, only_wave0=True, vt=(28, 29)):
    L = a.uid("L_sig")
    if only_wave0: a(f"s_cmp_lg_u32 s{B_WAVE}, 0\ns_cbranch_scc1 {L}")
    a(f"""
    v_mov_b32 v{vt[0]}, {off}
    v_mov_b32 v{vt[1]}, 1
    s_mov_b64 exec, 1
    buffer_atomic_add v{vt[1]}, v{vt[0]}, s[{B_WS}:{B_WS+3}], 0 offen
    s_mov_b64 exec, -1
    """)
    a.label(L)

def tstamp(a, slot, prof):
    if not prof: return
    a(f"""s_memrealtime s[60:61]
    s_waitcnt lgkmcnt(0)
    s_lshl_b32 s62, s2, 6
    s_add_u32 s62, s62, 0x{WS_PROF + 0x10000 + slot*4:x}
    v_mov_b32 v28, s60
    v_mov_b32 v29, 0
    s_mov_b64 exec, 1
    buffer_store_dword v28, v29, s[{B_WS}:{B_WS+3}], s62 offen
    s_mov_b64 exec, -1""")

def gen(prof=False, ccfg=None):
    a = Asm()
    hdr = open("concat_heads__softmax_full_mha__memory_aug_recurrent_mem_tr__prompt.s.ref").read().split("\n")
    for ln in hdr:
        if ln.startswith("; Override"): break
        a.raw(ln)
    a.raw(f"; @launch grid=(256,1,1) block=(256,1,1) lds=163840")
    a.raw('.amdgcn_target "amdgcn-amd-amdhsa--gfx950"\n.text\n.globl %s\n.p2align 8\n.type %s,@function' % (KN, KN))
    a.label(KN)
    a("s_cmp_ge_u32 s2, 256\ns_cbranch_scc1 L_end")
    a(f"s_and_b32 s3, s2, 7\ns_cmp_eq_u32 s3, 0\ns_cbranch_scc1 L_chain")
    bulk_setup(a)
    a(f"""
    s_lshr_b32 s{B_ID}, s2, 3
    s_mul_i32 s{B_ID}, s{B_ID}, 7
    s_add_u32 s{B_ID}, s{B_ID}, s3
    s_sub_u32 s{B_ID}, s{B_ID}, 1
    """)
    tstamp(a, 0, prof)
    a(f"s_cmp_lg_u32 s{B_ID}, 0\ns_cbranch_scc1 L_noinit")
    a(f"v_lshlrev_b32 v4, 4, v0\nv_mov_b64 v[8:9], 0\nv_mov_b64 v[10:11], 0\ns_mov_b32 s{B_T0}, 0x{WS_FLAG:x}")
    for j in range(F_SIZE // 4096):
        a(f"buffer_store_dwordx4 v[8:11], v4, s[{B_WS}:{B_WS+3}], s{B_T0} offen sc1\ns_add_u32 s{B_T0}, s{B_T0}, 4096")
    a(f"""
    s_waitcnt vmcnt(0)
    s_barrier
    v_mov_b32 v8, 12
    v_mov_b32 v9, 1
    s_mov_b64 exec, 1
    buffer_store_dword v9, v8, s[{B_DBG}:{B_DBG+3}], 0 offen sc1
    s_mov_b64 exec, -1
    """)
    a.label("L_noinit")
    a(f"s_and_b32 s{B_P0}, s{B_ID}, 31\ns_lshr_b32 s{B_P1}, s{B_ID}, 5\ns_mov_b32 s{B_CNT}, -1")
    def kv_pre(a):
        poll(a, B_DBG, 12, 1)
    def kv_post(a, vt, top):
        L = a.uid("L_kvp")
        if not top: a(f"s_add_u32 s{B_CNT}, s{B_CNT}, 1")
        a(f"""
        s_cmp_lg_u32 s{B_WAVE}, 0
        s_cbranch_scc1 {L}
        s_cmp_lt_i32 s{B_CNT}, 1
        s_cbranch_scc1 {L}
        s_lshl_b32 s{B_T0}, s{B_P0}, 5
        s_add_u32 s{B_T0}, s{B_T0}, s{B_P1}
        s_lshl_b32 s{B_T0}, s{B_T0}, 2
        s_add_u32 s{B_T0}, s{B_T0}, 0x{WS_FLAG + F_KV:x}
        v_mov_b32 v28, s{B_T0}
        v_mov_b32 v29, s{B_CNT}
        s_mov_b64 exec, 1
        buffer_store_dword v29, v28, s[{B_WS}:{B_WS+3}], 0 offen sc1
        s_mov_b64 exec, -1
        """)
        a.label(L)
        if top: a(f"s_add_u32 s{B_CNT}, s{B_CNT}, 1")
    task_kv(a, B_P0, B_P1, 7, post_block=kv_post, pre_store=kv_pre)
    tstamp(a, 1, prof)
    a(f"s_cmp_ge_u32 s{B_ID}, 216\ns_cbranch_scc1 L_noa1")
    a(f"s_mul_i32 s{B_P1}, s{B_ID}, 5462\ns_lshr_b32 s{B_P1}, s{B_P1}, 16\ns_mul_i32 s{B_P0}, s{B_P1}, 12\ns_sub_u32 s{B_P0}, s{B_ID}, s{B_P0}")
    task_a1(a, B_P0, B_P1, 18)
    a(f"s_and_b32 s{B_T1}, s{B_P0}, 3\ns_lshl_b32 s{B_T1}, s{B_T1}, 7\ns_add_u32 s{B_T1}, s{B_T1}, 0x{WS_FLAG + F_A1:x}")
    signal_add(a, f"s{B_T1}")
    a.label("L_noa1")
    tstamp(a, 2, prof)
    a(f"s_and_b32 s{B_P0}, s{B_ID}, 15\ns_lshr_b32 s{B_P1}, s{B_ID}, 4")
    task_q(a, B_P0, B_P1, 14)
    signal_add(a, f"0x{WS_FLAG + F_Q:x}")
    tstamp(a, 3, prof)
    a(f"s_and_b32 s{B_P0}, s{B_ID}, 31\ns_lshr_b32 s{B_P1}, s{B_ID}, 5")
    def a2dep(a):
        a(f"s_lshr_b32 s{B_T1}, s{B_P0}, 3\ns_lshl_b32 s{B_T1}, s{B_T1}, 7\ns_add_u32 s{B_T1}, s{B_T1}, 0x{WS_FLAG + F_A1:x}")
        poll(a, B_WS, f"s{B_T1}", 54)
    task_a2(a, B_P0, B_P1, 7, dep=a2dep, done=lambda a: signal_add(a, f"0x{WS_FLAG + F_A2:x}"))
    tstamp(a, 4, prof)
    a(f"s_cmp_ge_u32 s{B_ID}, 64\ns_cbranch_scc1 L_brole")
    a(f"s_cmp_eq_u32 s{B_ID}, 63\ns_cbranch_scc1 L_end")
    a(f"s_mul_i32 s{B_P1}, s{B_ID}, 21846\ns_lshr_b32 s{B_P1}, s{B_P1}, 16\ns_mul_i32 s{B_P0}, s{B_P1}, 3\ns_sub_u32 s{B_P0}, s{B_ID}, s{B_P0}")
    task_a3(a, B_P0, B_P1, 21, xdep=lambda a: poll(a, B_WS, f"0x{WS_FLAG + F_A2:x}", 224))
    tstamp(a, 5, prof)
    a("s_branch L_end")
    a.label("L_brole")
    a(f"s_cmp_ge_u32 s{B_ID}, 128\ns_cbranch_scc1 L_b3role")
    a(f"""
    s_and_b32 s{B_P0}, s{B_ID}, 31
    s_lshr_b32 s{B_P2}, s{B_ID}, 5
    s_and_b32 s{B_P2}, s{B_P2}, 1
    s_lshl_b32 s{B_P2}, s{B_P2}, 2
    s_add_u32 s{B_P2}, s{B_P2}, s{B_WAVE}
    """)
    poll(a, B_WS, f"0x{WS_FLAG + F_Q:x}", 224)
    def b2wait(a):
        a(f"s_lshl_b32 s{B_T1}, s{B_P0}, 7\ns_add_u32 s{B_T1}, s{B_T1}, 0x{WS_FLAG + F_PROG:x}\ns_add_u32 s{B_T2}, s{B_P2}, 1")
        poll(a, B_WS, f"s{B_T1}", f"s{B_T2}", vt=(12, 13), sleep=1)
    def b2done(a):
        a(f"s_lshl_b32 s{B_T1}, s{B_P2}, 7\ns_add_u32 s{B_T1}, s{B_T1}, 0x{WS_FLAG + F_SEG:x}")
        signal_add(a, f"s{B_T1}", only_wave0=False, vt=(12, 13))
    task_b2(a, B_P0, None, 8, wait_fn=b2wait, done_fn=b2done)
    tstamp(a, 5, prof)
    a("s_branch L_end")
    a.label("L_b3role")
    a(f"s_sub_u32 s{B_P0}, s{B_ID}, 128\ns_lshr_b32 s{B_P0}, s{B_P0}, 3\ns_and_b32 s{B_P1}, s{B_ID}, 7")
    def b3wait(a):
        a(f"s_lshr_b32 s{B_T1}, s{B_RB}, 1\ns_lshl_b32 s{B_T1}, s{B_T1}, 7\ns_add_u32 s{B_T1}, s{B_T1}, 0x{WS_FLAG + F_SEG:x}")
        poll(a, B_WS, f"s{B_T1}", 32, vt=(12, 13), sleep=1)
    task_b3(a, B_P0, B_P1, 8, wait_fn=b3wait)
    tstamp(a, 5, prof)
    a("s_branch L_end")
    a.label("L_chain")
    if prof: a("s_memrealtime s[86:87]")
    a(f"s_lshr_b32 s{chain.S_H}, s2, 3")
    C = chain
    def kvflags(a, ahead):
        L = a.uid("L_kf")
        if ahead == 1:
            poll(a, C.S_DBG, 12, 1, vt=(28, 29), st=(C.S_T0, C.S_SPIN))
            a(f"s_mov_b32 s{C.S_KVOK}, 0")
        a(f"""
        s_add_u32 s{C.S_T4}, s{C.S_STEP}, {ahead}
        s_min_u32 s{C.S_T4}, s{C.S_T4}, 63
        s_cmp_lt_u32 s{C.S_T4}, s{C.S_KVOK}
        s_cbranch_scc1 {L}_d
        s_mov_b32 s{C.S_SPIN}, 0
        s_lshl_b32 s{C.S_T1}, s{C.S_H}, 7
        s_add_u32 s{C.S_T1}, s{C.S_T1}, 0x{WS_FLAG + F_KV:x}
        v_lshrrev_b32 v13, 2, v0
        v_and_b32 v13, 28, v13
        """)
        a.label(L)
        a(f"""
        buffer_load_dword v14, v13, s[{C.S_WS}:{C.S_WS+3}], s{C.S_T1} offen sc1
        s_add_u32 s{C.S_SPIN}, s{C.S_SPIN}, 1
        s_cmp_gt_u32 s{C.S_SPIN}, {SPIN}
        s_cbranch_scc1 L_fail
        s_mov_b32 s{C.S_KVOK}, 1000
        s_waitcnt vmcnt(0)
        """)
        for r in range(7):
            a(f"v_readlane_b32 s{C.S_T2}, v14, {r}\ns_mul_i32 s{C.S_T2}, s{C.S_T2}, 7\ns_add_u32 s{C.S_T2}, s{C.S_T2}, {r}\ns_min_u32 s{C.S_KVOK}, s{C.S_KVOK}, s{C.S_T2}")
        a(f"s_cmp_lt_u32 s{C.S_T4}, s{C.S_KVOK}\ns_cbranch_scc0 {L}")
        if ahead == 1: a(f"v_lshlrev_b32 v13, 3, v0")
        a.label(L + "_d")
    def progress(a, rel):
        a(f"""
        s_add_i32 s{C.S_T1}, s{C.S_STEP}, {rel}
        s_max_i32 s{C.S_T1}, s{C.S_T1}, 0
        s_lshl_b32 s{C.S_T2}, s{C.S_H}, 7
        s_add_u32 s{C.S_T2}, s{C.S_T2}, 0x{WS_FLAG + F_PROG:x}
        v_mov_b32 v12, s{C.S_T1}
        v_mov_b32 v13, 0
        s_mov_b64 exec, 1
        buffer_store_dword v12, v13, s[{C.S_WS}:{C.S_WS+3}], s{C.S_T2} offen sc1
        s_mov_b64 exec, -1
        """)
    cfg = dict(spin=SPIN, r2=False, g2=False, rwait=(0, 1, 2), gwait=True, kvflags=kvflags, progress=progress)
    if prof:
        def prof_pro(a, w):
            a(f"""s_memrealtime s[70:71]
            s_waitcnt lgkmcnt(0)
            s_lshl_b32 s43, s{C.S_H}, 2
            s_add_u32 s43, s43, {w}
            s_lshl_b32 s43, s43, 6
            s_add_u32 s43, s43, 0x{WS_PROF+48:x}
            v_mov_b32 v28, s86
            v_mov_b32 v29, s70
            v_mov_b32 v30, 0
            s_mov_b64 exec, 1
            buffer_store_dwordx2 v[28:29], v30, s[8:11], s43 offen
            s_mov_b64 exec, -1""")
        def prog_last(a):
            a(f"""s_memrealtime s[70:71]
            s_waitcnt lgkmcnt(0)
            s_lshl_b32 s43, s{C.S_H}, 8
            s_add_u32 s43, s43, 0x{WS_PROF+56:x}
            v_mov_b32 v29, s70
            v_mov_b32 v30, 0
            s_mov_b64 exec, 1
            buffer_store_dword v29, v30, s[8:11], s43 offen
            s_mov_b64 exec, -1""")
        cfg.update(prof_pro=prof_pro, progress_last=prog_last)
    cfg.update(ccfg or {})
    chain.gen_chain(a, cfg)
    a.label("L_fail")
    a("""
    s_mov_b64 exec, 1
    v_mov_b32 v24, 16
    v_mov_b32 v25, 1
    buffer_atomic_add v25, v24, s[12:15], 0 offen
    """)
    a.label("L_end")
    a("s_endpgm")
    a.raw(kernel_desc(KN))
    print("instrs", a.ninstr, "padded", a.padded)
    return a.text()

if __name__ == "__main__":
    open("concat_heads__softmax_full_mha__memory_aug_recurrent_mem_tr__prompt.s", "w").write(gen())
    open("full_prof.s", "w").write(gen(prof=True))
```
